```python
import torch

def _softmax(x, axis=-1):
    return torch.softmax(x, dim=axis)
def _gelu(x):
    return torch.nn.functional.gelu(x, approximate="tanh")
def _silu(x):
    return torch.nn.functional.silu(x)
def _sigmoid(x):
    return torch.sigmoid(x)
def _layernorm(x, axis=-1, eps=1e-5):
    m = x.mean(dim=axis, keepdim=True)
    v = x.var(dim=axis, keepdim=True, unbiased=False)
    return (x - m) / torch.sqrt(v + eps)
def _scatter_add(tgt, idx, src, axis=0):
    return tgt.clone().index_add_(axis, idx, src)
def _segment_sum(src, seg, n):
    out = torch.zeros((n,) + src.shape[1:], dtype=src.dtype)
    return out.index_add_(0, seg, src)
def _pad(x, pw):
    flat = tuple(v for pair in reversed(pw) for v in pair)
    return torch.nn.functional.pad(x, flat)

kernel_name = 'parallel_sum__gqa_block_cached__glu_gated_bilinear__decode'

def setup_inputs():

    _w = (lambda a: (lambda t: t.to(torch.bfloat16) if t.is_floating_point() else t)(torch.as_tensor(a)))
    def _A_setup():
        B, Sq, D = 4, 1, 512
        Hq, Hkv, Sk, Dh = 32, 8, 4096, 128
        assert Hq % Hkv == 0, (Hq, Hkv)
        return {
            "x": _w((lambda *s: torch.randn(*s, dtype=torch.bfloat16) * 0.05)(B, Sq, D)),
            "k_cache": _w((lambda *s: torch.randn(*s, dtype=torch.bfloat16) * 1.6)(B, Hkv, Sk, Dh)),
            "v_cache": _w((lambda *s: torch.randn(*s, dtype=torch.bfloat16) * 0.8)(B, Hkv, Sk, Dh)),
            "wq": _w((lambda *s: torch.randn(*s, dtype=torch.bfloat16) * 1.6)(D, Hq * Dh) * (D ** -0.5)),
            "wo": _w((lambda *s: torch.randn(*s, dtype=torch.bfloat16) * 0.8)(Hq * Dh, D) * ((Hq * Dh) ** -0.5)),
        }
    _A_in = _A_setup()

    def _B_setup():
        B, S, D, F = 4, 1, 512, 1792
        return {
            "x": _w((lambda *s: torch.randn(*s, dtype=torch.bfloat16) * 0.05)(B, S, D)),
            "w_gate": _w((lambda *s: torch.randn(*s, dtype=torch.bfloat16) * 0.4)(D, F) * (D ** -0.5)),
            "w_up": _w((lambda *s: torch.randn(*s, dtype=torch.bfloat16) * 0.4)(D, F) * (D ** -0.5)),
            "w_down": _w((lambda *s: torch.randn(*s, dtype=torch.bfloat16) * 0.4)(F, D) * (F ** -0.5)),
        }
    _B_in = _B_setup()

    return {
        "A_x": _A_in["x"],
        "A_k_cache": _A_in["k_cache"],
        "A_v_cache": _A_in["v_cache"],
        "A_wq": _A_in["wq"],
        "A_wo": _A_in["wo"],
        "B_x": _B_in["x"],
        "B_w_gate": _B_in["w_gate"],
        "B_w_up": _B_in["w_up"],
        "B_w_down": _B_in["w_down"],
    }

def reference(A_x, A_k_cache, A_v_cache, A_wq, A_wo, B_x, B_w_gate, B_w_up, B_w_down):
    def _A_ref(x, k_cache, v_cache, wq, wo):
        B, Sq, D = x.shape
        Hq, Dh = 32, 128
        Hkv = k_cache.shape[1]
        rep = Hq // Hkv
        q = (lambda x, *d: x.permute(*d))((x @ wq).reshape(B, Sq, Hq, Dh), 0, 2, 1, 3)
        k = (lambda x, n, axis: torch.repeat_interleave(x, n, dim=axis))(k_cache, rep, axis=1)
        v = (lambda x, n, axis: torch.repeat_interleave(x, n, dim=axis))(v_cache, rep, axis=1)
        scores = torch.einsum("bhqd,bhkd->bhqk", q, k) * (Dh ** -0.5)
        p = _softmax(scores, axis=-1)
        o = torch.einsum("bhqk,bhkd->bhqd", p, v)
        return (lambda x, *d: x.permute(*d))(o, 0, 2, 1, 3).reshape(B, Sq, Hq * Dh) @ wo

    def _B_ref(x, w_gate, w_up, w_down):
        g = torch.einsum("bsd,df->bsf", x, w_gate)
        u = torch.einsum("bsd,df->bsf", x, w_up)
        h = g * u
        return torch.einsum("bsf,fd->bsd", h, w_down)

    x = A_x
    xn = _layernorm(x, axis=-1)
    return x + _A_ref(xn, A_k_cache, A_v_cache, A_wq, A_wo) + _B_ref(xn, B_w_gate, B_w_up, B_w_down)
```

```python
import re

REG_RE = re.compile(r'\b([vsa])(\d+)\b|\b([vsa])\[(\d+):(\d+)\]|\b(vcc|exec|m0|scc)\b')

def regs_of(txt):
    out = []
    for m in REG_RE.finditer(txt):
        if m.group(1):
            out.append((m.group(1), int(m.group(2))))
        elif m.group(3):
            for i in range(int(m.group(4)), int(m.group(5)) + 1):
                out.append((m.group(3), i))
        else:
            out.append((m.group(6), 0))
    return out

TRANS = ("v_exp_f32", "v_log_f32", "v_rcp_f32", "v_rsq_f32", "v_sqrt_f32", "v_sin_f32", "v_cos_f32")

def mfma_passes(op):
    if "4x4x4" in op: return 2
    if "16x16x32" in op or "16x16x16" in op: return 4
    if "32x32x16" in op or "32x32x8" in op: return 8
    raise ValueError(op)

class Emitter:
    def __init__(self):
        self.lines = []
        self.slot = 0
        self.hist = []
        self.nops_added = 0

    def raw(self, s):
        self.lines.append(s)

    def label(self, name):
        self.lines.append(f"{name}:")

    def comment(self, s):
        self.lines.append(f"  ; {s}")

    def note(self, s):
        self.lines[-1] = self.lines[-1].ljust(64) + " ; " + s

    def nop(self, n):
        while n > 0:
            k = min(n, 16)
            self.lines.append(f"  s_nop {k-1}")
            self.slot += k
            n -= k

    def __call__(self, text):
        text = text.strip()
        op, _, rest = text.partition(" ")
        ops = [o.strip() for o in self._split(rest)]
        kind, wr, rd, extra = self._classify(op, ops, rest)
        need = 0
        cur = self.slot
        for (s, k, info) in self.hist[-40:]:
            dist = cur - s - 1
            req = self._req(k, info, kind, op, wr, rd, extra)
            if req > dist:
                need = max(need, req - dist)
        if need:
            self.nop(need)
            self.nops_added += need
        self.lines.append("  " + text)
        self.hist.append((self.slot, kind, dict(op=op, wr=set(wr), rd=set(rd), extra=extra)))
        if op == "s_nop":
            self.slot += int(ops[0], 0) + 1
        else:
            self.slot += 1

    @staticmethod
    def _split(rest):
        out, depth, cur = [], 0, ""
        for ch in rest:
            if ch == "[": depth += 1
            if ch == "]": depth -= 1
            if ch == "," and depth == 0:
                out.append(cur); cur = ""
            else:
                cur += ch
        if cur.strip(): out.append(cur)
        return out

    def _classify(self, op, ops, rest):
        extra = {}
        def R(i):
            return regs_of(ops[i].split(" ")[0]) if i < len(ops) else []
        allr = [regs_of(o.split(" ")[0] if not o.startswith("-") and not o.startswith("abs") else o) for o in ops]
        if op.startswith("v_mfma"):
            extra = dict(passes=mfma_passes(op), A=set(allr[1]), B=set(allr[2]), C=set(allr[3]), D=set(allr[0]))
            return "mfma", allr[0], allr[1] + allr[2] + allr[3], extra
        if op.startswith("v_"):
            dpp = "_dpp" in op or "row_" in rest or "quad_perm" in rest
            extra["dpp"] = set(allr[1]) if dpp else set()
            if op.startswith("v_permlane"):
                extra["perm"] = True
                return "valu", allr[0] + allr[1], allr[0] + allr[1], extra
            if op.startswith("v_cmp"):
                return "valu", allr[0], sum(allr[1:], []), extra
            if op.startswith(("v_add_co", "v_sub_co", "v_addc_co", "v_subb_co")):
                return "valu", allr[0] + allr[1], sum(allr[2:], []), extra
            if op.startswith(("v_readlane", "v_readfirstlane")):
                extra["rl"] = True
                extra["lanesel"] = set(allr[2]) if len(allr) > 2 else set()
                return "valu", allr[0], sum(allr[1:], []), extra
            rd = sum(allr[1:], [])
            if op.startswith(("v_fmac", "v_dot2c", "v_pk_fmac")) or dpp:
                rd = rd + allr[0]
            if op.startswith("v_cndmask") and len(ops) == 3:
                rd = rd + [("vcc", 0)]
            if op.replace("_e32", "").replace("_e64", "") in TRANS: extra["trans"] = True
            if op.startswith("v_dot"): extra["dot"] = True
            return "valu", allr[0], rd, extra
        if op.startswith("ds_"):
            if op.startswith(("ds_read", "ds_bpermute", "ds_permute", "ds_swizzle")) or "_rtn" in op:
                return "ds", allr[0], sum(allr[1:], []), extra
            return "ds", [], sum(allr, []), extra
        if op.startswith(("global_", "buffer_")):
            if "_lds_" in op or " lds" in rest:
                extra["ldsdma"] = True
                return "vmem", [], sum(allr, []), extra
            if "load" in op:
                return "vmem", allr[0], sum(allr[1:], []), extra
            if "atomic" in op and "sc0" in rest:
                return "vmem", allr[0], sum(allr[1:], []), extra
            if op.endswith(("x3", "x4")):
                extra["widestore"] = set(allr[1]) if op.startswith("global_") else set(allr[0])
            return "vmem", [], sum(allr, []), extra
        if op.startswith("s_"):
            wr = []
            if op.startswith(("s_cmp", "s_cbranch", "s_branch", "s_waitcnt", "s_nop", "s_barrier", "s_endpgm", "s_sleep", "s_setprio", "s_bitcmp")):
                return "salu", [], sum(allr, []), extra
            wr = allr[0]
            if "saveexec" in op: wr = wr + [("exec", 0)]
            return "salu", wr, sum(allr[1:], []), extra
        raise ValueError("unknown op " + op)

    def _req(self, pk, p, ck, cop, cwr, crd, cex):
        req = 0
        pwr = p["wr"]; crd = set(crd); cwr = set(cwr)
        pv = {r for r in pwr if r[0] in "va"}
        ps = {r for r in pwr if r[0] == "s" or r[0] == "vcc"}
        if pk == "valu":
            if ck == "mfma" and pv & crd: req = max(req, 2)
            if ck == "valu":
                if cex.get("dpp") and pv & cex["dpp"]: req = max(req, 2)
                if cex.get("perm") and pv & crd: req = max(req, 2)
                if cex.get("rl") and pv & crd: req = max(req, 1)
                if p["extra"].get("trans") and pv & crd: req = max(req, 1)
                if ps & crd: req = max(req, 2)
                if cex.get("lanesel") and ps & cex["lanesel"]: req = max(req, 4)
                if p["extra"].get("dot"):
                    if pv & (crd | cwr):
                        same = p["op"] == cop
                        req = max(req, 0 if (same and not (pv & (crd - cwr))) else 3)
                if ("exec", 0) in pwr: req = max(req, 5)
            if ck in ("vmem", "ds") and p["extra"].get("dot") and pv & crd: req = max(req, 3)
            if ck in ("vmem", "ds") and p["extra"].get("trans") and pv & crd: req = max(req, 1)
            if ck == "mfma" and p["extra"].get("dot") and pv & crd: req = max(req, 3)
            if ck == "vmem" and ps & crd: req = max(req, 5)
            if ck == "salu" and ps & crd: req = max(req, 1)
        if pk == "mfma":
            P = p["extra"]["passes"]
            D = p["extra"]["D"]
            big = {2: 5, 4: 8, 8: 12, 16: 20}[P]
            if ck == "mfma":
                if D & (cex["A"] | cex["B"]): req = max(req, big)
                if D & cex["C"]:
                    if D == cex["C"] and P == cex["passes"]:
                        req = max(req, 2 if P == 2 else 0)
                    else:
                        req = max(req, {2: 4, 4: 6, 8: 10, 16: 18}[P])
                elif D & cex["D"]:
                    req = max(req, big)
            else:
                if D & (crd | cwr): req = max(req, big)
            if ck == "valu" and p["extra"]["C"] & cwr:
                req = max(req, {2: 1, 4: 3, 8: 7, 16: 15}[P])
        if pk == "salu":
            if ("m0", 0) in pwr and cex.get("ldsdma"): req = max(req, 1)
        if pk == "vmem" and p["extra"].get("widestore"):
            if p["extra"]["widestore"] & cwr: req = max(req, 2)
        return req

    def text(self):
        return "\n".join(self.lines) + "\n"
```

```python
import sys
from asmlib import *
from emit import Emitter

WS_QP, WS_EP, WS_STAT, WS_GP, WS_OB1, WS_OB2, WS_HF2 = 0, 0x40000, 0x44000, 0x48000, 0x90000, 0x120000, 0x190000
OB1S, OB2S = 2304, 1280
F_QPUB, F_QRDY, F_ODONE, F_DONE, F_JUNK, F_OT, F_XN, F_RP, F_PF, F_VI, F_TK, F_SX, F_GT, F_T2, L_FAC = 0, 88, 8, 12, 16, 20, 24, 28, 32, 64, 72, 76, 80, 84, 128
F_MIX = 92
L_ST, L_Q, L_P, L_XN, L_H, L_PART, L_W, L_WO = 0x100, 0x200, 0x600, 0x1800, 0x1c00, 0x2000, 0x6400, 0xE400
PARTW, PARTH = 2176, 544
L_OR = L_WO + 4 * 6144
LDS_BYTES = L_OR + 4096
NSTAMP = 24
SB = 72
LOG2E = 0x3FB8AA3B
SCALE = 0x3DB504F3
TIMEOUT = 1 << 20
STN = ["start", "xland", "lndone", "wland", "qpub", "kissued", "gath0", "qrecv", "smax", "Oh", "Ostat", "Ogo", "Vissued", "Vland",
       "Rgo", "Rpub", "h1", "Opub", "h2", "end", "h1r1", "h1n", "h2n", "qn"]

def gen(name, stamps=False, kvflags="nt", wflags="nt", out_path=None, g1=10, osleep=0, prefsplit=True,
        pf1=0, svi=3, wodone=8, tkat=14, forcex=False, d2=0, hmode=2, fld='sc0 sc1', fsleep=0, t2at=8, padto=0, fgate=4, opipe=False, wotime=0, worot=None, wof=None, tlbw=False, tlbo=False, mixafter=2, earlybar=False, wrot=False, lst='', kfl=None, vfl=None, light='hi'):
    e = Emitter()
    NT = {'odd': 0xc1, 'hi': 0xc4}[light]
    kvf = (" " + kvflags) if kvflags else ""
    wf = (" " + wflags) if wflags else ""
    order = {"start":0, "xland":1, "lndone":2, "wland":3, "qpub":4, "kissued":5, "gath0":1, "qrecv":6, "smax":7, "Oh":1, "Ostat":2,
             "Ogo":3, "Vissued":1, "Vland":2, "Rgo":8, "Rpub":9, "h1":8, "Opub":9, "h2":8, "end":9, "h1r1":10, "h1n":11, "h2n":11, "qn":11}
    def sreg(nm): return SB + 2 * order[nm]
    def stamp(nm):
        if stamps: e(f"s_memrealtime s[{sreg(nm)}:{sreg(nm)+1}]")
    def count(nm, s_from):
        if stamps:
            e("s_waitcnt lgkmcnt(0)")
            e(f"s_sub_u32 s{s_from}, s{s_from}, s15")
            e(f"s_mul_i32 s{s_from}, s{s_from}, 100")
            e(f"s_add_u32 s{sreg(nm)}, s{SB}, s{s_from}")
            e(f"s_addc_u32 s{sreg(nm)+1}, s{SB+1}, 0")
    def flush(nms):
        if stamps and nms:
            e("s_mov_b64 exec, -1")
            e("s_waitcnt vmcnt(0) lgkmcnt(0)")
            e(f"s_mul_i32 s40, s2, {NSTAMP*8}")
            e("s_add_u32 s40, s40, 0x8000000")
            e("s_add_u32 s40, s38, s40")
            e("s_addc_u32 s41, s39, 0")
            e("v_mov_b32 v1, 0")
            for nm in nms:
                e(f"v_mov_b32 v2, s{sreg(nm)}")
                e(f"v_mov_b32 v3, s{sreg(nm)+1}")
                e(f"global_store_dwordx2 v1, v[2:3], s[40:41] offset:{8*STN.index(nm)}")
                e("s_nop 1")
        e("s_endpgm")

    def allred(op, r, t, lanes16=(1, 2, 4, 8)):
        for sh in lanes16:
            e(f"{op}_dpp v{r}, v{r}, v{r} row_ror:{sh} row_mask:0xf bank_mask:0xf")
        for sw in ("v_permlane16_swap_b32", "v_permlane32_swap_b32"):
            e(f"v_mov_b32 v{t}, v{r}")
            e(f"{sw} v{r}, v{t}")
            e(f"{op} v{r}, v{r}, v{t}")

    def poll_tail(lbl_loop, lbl_done, sleep=2):
        e(f"s_cbranch_vccz {lbl_done}")
        if sleep: e(f"s_sleep {sleep}")
        e("s_sub_u32 s15, s15, 1")
        e(f"s_cbranch_scc0 {lbl_loop}")
        e("s_mov_b32 s15, 0")
        e.label(lbl_done)

    def lds_wait(tag, off, cmp, val, vaddr, vt, sleep=2):
        e.label(f"L_{tag}")
        e(f"ds_read_b32 v{vt}, v{vaddr} offset:{off}")
        e("s_waitcnt lgkmcnt(0)")
        e(f"v_cmp_{cmp}_u32 vcc, {val}, v{vt}")
        poll_tail(f"L_{tag}", f"L_{tag}ok", sleep)

    def lds_add(off, vval, vzero=19, restore=True):
        e("s_mov_b64 exec, 1")
        e(f"ds_add_u32 v{vzero}, v{vval} offset:{off}")
        if restore: e("s_mov_b64 exec, -1")

    def wsaddr(sd, soff, const):
        if const: e(f"s_add_u32 s{sd}, s{soff}, {const:#x}")
        elif sd != soff: e(f"s_mov_b32 s{sd}, s{soff}")
        e(f"s_add_u32 s{sd}, s38, s{sd}")
        e(f"s_addc_u32 s{sd+1}, s39, 0")

    def kvloads(sb, va):
        o = kfl if sb == 18 else vfl
        kvf = ((" " + kvflags) if kvflags else "") if o is None else ((" " + o) if o else "")
        e(f"s_add_u32 s68, s{sb}, s9")
        e(f"s_addc_u32 s69, s{sb+1}, 0")
        e("s_movk_i32 s70, 0x4000")
        e("s_mov_b32 s71, 0x00020000")
        for n in range(16):
            e(f"s_xor_b32 s8, s11, {n<<10}")
            e(f"buffer_load_dwordx4 v[{64+4*n}:{67+4*n}], v{va}, s[68:71], s8 offen{kvf}")

    TG = 96
    def make_tag():
        e("s_add_u32 s26, s37, 1")
        for i, c in enumerate((0, 0x35, 0x5a, 0x6f)):
            if c: e(f"s_add_u32 s{TG+i}, s26, {c:#x}")
            e(f"s_and_b32 s{TG+i}, s{TG+i if c else 26}, 0xff")
        e("v_mov_b32 v29, 0xffffff00")

    def xtags(base, only_wave=None):
        e("s_getreg_b32 s36, hwreg(HW_REG_XCC_ID, 0, 4)")
        if only_wave is not None:
            e(f"s_cmp_eq_u32 s3, {only_wave}")
            e("s_cselect_b32 s36, s36, 0")
        for i in range(4):
            e(f"s_lshl_b32 s{base+i}, s36, {7-i}")
            e(f"s_and_b32 s{base+i}, s{base+i}, 0x80")
            e(f"s_xor_b32 s{base+i}, s{base+i}, s{TG+i}")

    def tag(regs, base=None):
        for r in regs: e(f"v_and_or_b32 v{r}, v{r}, v29, s{(TG if base is None else base) + r % 4}")

    def untag(regs, base=None):
        for r in regs: e(f"v_xor_b32 v{r}, s{(TG if base is None else base) + r % 4}, v{r}")

    def or_all(regs, t, mask=0xff):
        e(f"v_or3_b32 v{t}, v{regs[0]}, v{regs[1]}, v{regs[2]}")
        rest = regs[3:]
        while len(rest) >= 2:
            e(f"v_or3_b32 v{t}, v{t}, v{rest[0]}, v{rest[1]}"); rest = rest[2:]
        if rest: e(f"v_or_b32 v{t}, v{t}, v{rest[0]}")
        if mask is not None: e(f"v_and_b32 v{t}, {mask:#x}, v{t}")

    def gather32(tagname, loads, xt, sleep, mix=False):
        if stamps: e("s_mov_b32 s53, s15")
        e.label(f"L_{tagname}")
        for l in loads: e(l)
        e("s_waitcnt vmcnt(0)")
        untag(range(32, 64), xt)
        or_all(list(range(32, 64)), 9, None)
        e(f"v_and_b32 v8, {0xff if xt is None else 0x7f:#x}, v9")
        e("v_cmp_ne_u32 vcc, 0, v8")
        e(f"s_cbranch_vccz L_{tagname}ok")
        e("s_mov_b64 exec, vcc")
        if mix:
            e("s_sub_u32 s48, s48, 1")
            e(f"s_cbranch_scc0 L_{tagname}m")
            e(f"ds_write_b32 v19, v10 offset:{F_MIX}")
            e("s_sleep 8")
            e.label(f"L_{tagname}m")
        if sleep: e(f"s_sleep {sleep}")
        e("s_sub_u32 s15, s15, 1")
        e(f"s_cbranch_scc0 L_{tagname}")
        e("s_mov_b32 s15, 0")
        e.label(f"L_{tagname}ok")
        e("s_mov_b64 exec, -1")

    def sum4():
        for i in range(4):
            e(f"v_pk_add_f32 v[{32+2*i}:{33+2*i}], v[{32+2*i}:{33+2*i}], v[{40+2*i}:{41+2*i}]")
            e(f"v_pk_add_f32 v[{48+2*i}:{49+2*i}], v[{48+2*i}:{49+2*i}], v[{56+2*i}:{57+2*i}]")
        for i in range(4):
            e(f"v_pk_add_f32 v[{32+2*i}:{33+2*i}], v[{32+2*i}:{33+2*i}], v[{48+2*i}:{49+2*i}]")

    def round4(base, c0, c1):
        e(f"v_cvt_pk_bf16_f32 v{c0}, v{base}, v{base+1}")
        e(f"v_cvt_pk_bf16_f32 v{c1}, v{base+2}, v{base+3}")
        e(f"v_lshlrev_b32 v{base}, 16, v{c0}")
        e(f"v_and_b32 v{base+1}, 0xffff0000, v{c0}")
        e(f"v_lshlrev_b32 v{base+2}, 16, v{c1}")
        e(f"v_and_b32 v{base+3}, 0xffff0000, v{c1}")

    def ctg(d, t):
        if light == 'odd':
            e(f"s_lshr_b32 s{d}, s4, 1")
            e(f"s_mul_i32 s{d}, s{d}, 7")
            e(f"s_and_b32 s{t}, s4, 1")
            e(f"s_lshl_b32 s{t}, s{t}, 2")
            e(f"s_add_u32 s{d}, s{d}, s{t}")
        else:
            e(f"s_mul_i32 s{d}, s4, 3")
            e(f"s_min_u32 s{t}, s4, 4")
            e(f"s_add_u32 s{d}, s{d}, s{t}")
        e(f"s_lshr_b32 s{t}, s5, 3")
        e(f"s_add_u32 s{d}, s{d}, s{t}")

    def store2(lbl, txt):
        e(f"s_cbranch_scc1 L_{lbl}a")
        e(txt + (" " + lst if lst else ""))
        e(f"s_branch L_{lbl}b")
        e.label(f"L_{lbl}a")
        e(txt + " sc1")
        e.label(f"L_{lbl}b")

    e("s_load_dwordx16 s[16:31], s[0:1], 0")
    e("s_load_dwordx8 s[32:39], s[0:1], 64")
    e("s_cmp_ge_u32 s2, 256")
    e("s_cbranch_scc1 L_exit")
    e("v_lshrrev_b32 v1, 6, v0")
    e("s_lshr_b32 s5, s2, 3")
    e("v_readfirstlane_b32 s3, v1")
    e("s_getpc_b64 s[40:41]")
    e.label("L_pc")
    if prefsplit:
        e("s_xor_b32 s4, s3, s5")
        e("s_and_b32 s4, s4, 3")
        e("s_cbranch_scc1 L_nopf")
    e("v_lshlrev_b32 v1, 4, v0")
    e("v_min_u32 v1, L_codeend-L_pc-4, v1")
    e("global_load_dword v63, v1, s[40:41]")
    e.label("L_nopf")
    stamp("start")
    if padto: e("s_memrealtime s[72:73]")
    e("v_and_b32 v0, 63, v0")
    e("s_and_b32 s4, s2, 7")
    e("s_and_b32 s42, s5, 3")
    e("s_lshr_b32 s43, s5, 2")
    e("v_lshrrev_b32 v4, 3, v0")
    e("v_and_b32 v5, 7, v0")
    e(f"s_and_b32 s14, s2, {NT:#x}")
    e("s_cmp_gt_u32 s3, 2")
    e("s_cbranch_scc1 L_pro2")
    e("s_setprio 3")
    if earlybar: e("s_barrier")
    e("s_cmp_lt_u32 s3, 2")
    e("s_cbranch_scc1 L_early")
    e("s_lshl_b32 s46, s42, 20")
    e("s_lshl_b32 s47, s4, 10")
    e("s_add_u32 s46, s46, s47")
    e("s_lshl_b32 s47, s43, 7")
    e("s_add_u32 s46, s46, s47")
    e("v_lshlrev_b32 v4, 13, v4")
    e(f"s_mov_b32 m0, {L_W+16384}")
    e("s_waitcnt lgkmcnt(0)")
    e("s_add_u32 s40, s22, s46")
    e("s_addc_u32 s41, s23, 0")
    e("s_mov_b32 s46, 0x10000")
    e.label("L_dma0")
    e("v_lshl_add_u32 v4, v5, 4, v4")
    e("s_mov_b32 s48, 16")
    if wrot:
        e("s_mov_b32 s49, m0")
        e("s_lshl_b32 s50, s5, 2")
        e("s_add_u32 s50, s50, s43")
        e("s_add_u32 s50, s50, s4")
        e.label("L_dma")
        e("s_add_u32 s51, s48, s50")
        e("s_and_b32 s51, s51, 15")
        e("s_lshl_b32 s52, s51, 10")
        e("s_add_u32 m0, s49, s52")
        e("s_mul_i32 s51, s51, s46")
        e("s_add_u32 s52, s40, s51")
        e("s_addc_u32 s53, s41, 0")
        e(f"global_load_lds_dwordx4 v4, s[52:53]{wf}")
    else:
        e.label("L_dma")
        e(f"global_load_lds_dwordx4 v4, s[40:41]{wf}")
        e("s_add_u32 s40, s40, s46")
        e("s_addc_u32 s41, s41, 0")
        e("s_add_u32 m0, m0, 1024")
    e("s_sub_u32 s48, s48, 1")
    e("s_cmp_lg_u32 s48, 0")
    e("s_cbranch_scc1 L_dma")
    e.label("L_pro2")
    e("s_lshr_b32 s6, s5, 3")
    e("s_and_b32 s7, s5, 7")
    e("s_lshl_b32 s8, s6, 3")
    e("s_add_u32 s8, s8, s4")
    e("s_lshl_b32 s8, s8, 3")
    e("s_add_u32 s8, s8, s7")
    e("s_lshl_b32 s9, s8, 17")
    e("s_and_b32 s10, s3, 7")
    e("s_lshl_b32 s11, s10, 14")
    e("s_add_u32 s9, s9, s11")
    e("s_lshl_b32 s11, s3, 1")
    e("s_add_u32 s11, s11, s5")
    e("s_and_b32 s11, s11, 15")
    e("s_lshl_b32 s11, s11, 10")
    e(f"s_mov_b32 s15, {TIMEOUT}")
    e("s_mov_b32 s100, 0")
    e("v_mov_b32 v19, 0")
    if earlybar:
        e("s_cmp_lt_u32 s3, 3")
        e("s_cbranch_scc1 L_bar1")
    e("s_cmp_lg_u32 s3, 3")
    e("s_cbranch_scc1 L_bar0")
    e("v_lshlrev_b32 v1, 2, v0")
    e("ds_write_b32 v1, v19")
    e("s_waitcnt lgkmcnt(0)")
    e.label("L_bar0")
    e("s_barrier")
    e.label("L_bar1")
    e("s_waitcnt lgkmcnt(0)")
    e("s_cmp_lt_u32 s3, 8")
    e("s_cbranch_scc1 L_kside")

    e("v_lshlrev_b32 v1, 4, v0")
    kvloads(20, 1)
    e("v_mov_b32 v3, 1")
    lds_add(F_VI, 3)
    stamp("Vissued")
    e("v_lshrrev_b32 v2, 4, v0")
    e("v_lshlrev_b32 v2, 7, v2")
    e("v_and_b32 v17, 3, v0")
    e("v_lshl_add_u32 v5, v17, 5, v2")
    e("s_lshl_b32 s40, s10, 9")
    e("v_add_u32 v5, s40, v5")
    e("v_bfe_u32 v8, v0, 2, 2")
    e(f"v_mul_u32_u24 v4, {PARTH}, v17")
    e("v_add_u32 v4, v4, v2")
    e("v_lshl_add_u32 v4, v8, 4, v4")
    e(f"s_mul_i32 s41, s10, {PARTW}")
    e("v_add_u32 v4, s41, v4")
    e("v_mov_b32 v9, 0x0c0c0c0c")
    e("v_and_b32 v10, 1, v8")
    e("v_lshlrev_b32 v10, 4, v10")
    e("v_mov_b32 v11, 0x0d0c")
    e("v_lshlrev_b32 v11, v10, v11")
    e("v_xor_b32 v11, v9, v11")
    e("v_mov_b32 v12, 0x0f0e")
    e("v_lshlrev_b32 v12, v10, v12")
    e("v_xor_b32 v12, v9, v12")
    e("v_cmp_gt_u32 vcc, 2, v8")
    e("v_cndmask_b32 v13, v9, v11, vcc")
    e("v_cndmask_b32 v14, v11, v9, vcc")
    e("v_cndmask_b32 v15, v9, v12, vcc")
    e("v_cndmask_b32 v16, v12, v9, vcc")
    e("s_lshl_b32 s42, s10, 2")
    e("v_mov_b32 v6, s42")
    lds_wait("vwait", F_PF, "eq", 0, 6, 7)
    e(f"ds_read_b128 v[24:27], v5 offset:{L_P}")
    e(f"ds_read_b128 v[28:31], v5 offset:{L_P+16}")
    e("s_waitcnt vmcnt(16) lgkmcnt(0)")
    for n in range(16):
        e(f"v_perm_b32 v{32+2*n}, v{24+n//2}, v{24+n//2}, v{13+2*(n%2)}")
        e(f"v_perm_b32 v{33+2*n}, v{24+n//2}, v{24+n//2}, v{14+2*(n%2)}")
    for n in range(16):
        e(f"s_waitcnt vmcnt({15-n})")
        if n == 15: stamp("Vland")
        for h in range(2):
            acc = f"v[{8+4*h}:{11+4*h}]"
            e(f"v_mfma_f32_16x16x16_bf16 {acc}, v[{64+4*n+2*h}:{65+4*n+2*h}], v[{32+2*n}:{33+2*n}], {'0' if n == 0 else acc}")
        if n == 13: e("s_setprio 3")
        if n == tkat: lds_add(F_TK, 3)
        if n == t2at and t2at != tkat: lds_add(F_T2, 3)
    for h in range(2):
        e(f"ds_write_b128 v4, v[{8+4*h}:{11+4*h}] offset:{L_PART+64*h}")
    e("s_mov_b64 exec, 1")
    if stamps:
        e(f"ds_add_rtn_u32 v7, v19, v3 offset:{F_DONE}")
        e("s_waitcnt lgkmcnt(0)")
        e("v_readfirstlane_b32 s46, v7")
        e("s_cmp_lg_u32 s46, 7")
        e("s_cbranch_scc1 L_exit")
        flush(["Vissued", "Vland"])
    else:
        e(f"ds_add_u32 v19, v3 offset:{F_DONE}")
    e.label("L_exit")
    e("s_endpgm")

    e.label("L_early")
    e("s_cmp_eq_u32 s3, 0")
    e("s_cbranch_scc1 L_xld")
    e(f"s_cmp_eq_u32 s14, {NT:#x}")
    e("s_cbranch_scc1 L_pro2")
    ctg(54, 55)
    e("s_and_b32 s55, s43, 1")
    e("s_mul_i32 s46, s42, 458752")
    e("s_lshl_b32 s47, s54, 7")
    e("s_add_u32 s46, s46, s47")
    e("v_mul_u32_u24 v4, 3584, v4")
    e(f"s_mov_b32 m0, {L_W}")
    e("s_waitcnt lgkmcnt(0)")
    e("s_cmp_eq_u32 s55, 0")
    e("s_cselect_b32 s40, s28, s30")
    e("s_cselect_b32 s41, s29, s31")
    e("s_add_u32 s40, s40, s46")
    e("s_addc_u32 s41, s41, 0")
    e("s_movk_i32 s46, 28672")
    e("s_branch L_dma0")
    e.label("L_xld")
    e("v_lshrrev_b32 v1, 4, v0")
    e("v_and_b32 v3, 15, v0")
    e("v_lshlrev_b32 v2, 10, v1")
    e("v_lshl_add_u32 v2, v3, 4, v2")
    for j in range(4):
        e(f"s_add_u32 s47, s42, {j}")
        e("s_and_b32 s47, s47, 3")
        e("s_lshl_b32 s47, s47, 8")
        e(f"v_add_u32 v{6+j}, s47, v2")
    e("s_waitcnt lgkmcnt(0)")
    for j in range(4):
        e(f"global_load_dwordx4 v[{64+4*j}:{67+4*j}], v{6+j}, s[16:17]")
    e("s_branch L_pro2")

    e.label("L_kside")
    e(f"s_load_dword s37, s[38:39], {WS_EP:#x}")
    e("s_cmp_eq_u32 s3, 0")
    e("s_cbranch_scc1 L_ln")
    e("s_cmp_eq_u32 s3, 2")
    e("s_cbranch_scc1 L_tileq")
    e("s_cmp_lg_u32 s3, 1")
    e("s_cbranch_scc1 L_ks2")
    e(f"s_cmp_lg_u32 s14, {NT:#x}")
    e("s_cbranch_scc1 L_tileg")
    e.label("L_ks2")
    e("s_setprio 3")
    e("s_cmp_lt_u32 s3, 4")
    e("s_cbranch_scc1 L_kpart")
    e("s_setprio 2")

    e.label("L_kpart")
    e("v_bfe_u32 v17, v0, 2, 2")
    e("v_lshlrev_b32 v1, 8, v17")
    e("v_lshrrev_b32 v2, 4, v0")
    e("v_lshl_add_u32 v1, v2, 6, v1")
    e("v_and_b32 v3, 3, v0")
    e("v_lshl_add_u32 v1, v3, 4, v1")
    kvloads(18, 1)
    stamp("kissued")
    e("v_lshlrev_b32 v18, 7, v2")
    e("v_lshl_add_u32 v18, v3, 5, v18")
    e("v_lshl_add_u32 v18, v17, 3, v18")
    e("s_lshl_b32 s42, s10, 9")
    e("v_add_u32 v18, s42, v18")
    e("v_lshlrev_b32 v16, 8, v3")
    e("v_lshl_add_u32 v16, v2, 6, v16")
    e("v_lshl_add_u32 v16, v17, 4, v16")
    e("s_lshl_b32 s13, s4, 2")
    e("s_add_u32 s13, s13, s6")
    e("s_waitcnt lgkmcnt(0)")
    make_tag()
    e("s_cmp_lg_u32 s3, 3")
    e("s_cbranch_scc1 L_qw")
    e("v_lshlrev_b32 v20, 4, v0")
    e("v_add_u32 v21, 0x2000, v20")
    e("v_add_u32 v22, 0x4000, v20")
    e("v_add_u32 v23, 0x6000, v20")
    e("s_lshl_b32 s40, s4, 15")
    e("s_lshl_b32 s41, s6, 11")
    e("s_add_u32 s40, s40, s41")
    wsaddr(40, 40, WS_QP)
    xtags(44)
    e(f"s_mov_b32 s48, {mixafter-1}")
    e("v_mov_b32 v10, 1")
    lds_wait("qpub", F_QPUB, "eq", 0, 19, 8, sleep=2)
    if g1: e(f"s_sleep {g1}")
    stamp("gath0")
    gather32("qpoll", [f"global_load_dwordx4 v[{32+4*i}:{35+4*i}], v{20+i//2}, s[40:41] offset:{1024*(i%2)} sc1" for i in range(8)], 44, 0, mix=True)
    count("qn", 53)
    e("v_and_b32 v8, 0x80, v9")
    e("v_cmp_ne_u32 vcc, 0, v8")
    e("v_mov_b32 v8, %d" % (1 if forcex else 0))
    e("s_cbranch_vccz L_samex")
    for r in range(32, 64): e(f"v_and_b32 v{r}, v29, v{r}")
    e("v_mov_b32 v8, 1")
    e.label("L_samex")
    e(f"ds_write_b32 v19, v8 offset:{F_SX}")
    e(f"ds_or_b32 v19, v8 offset:{F_MIX}")
    sum4()
    for i in range(4):
        e(f"v_cvt_pk_bf16_f32 v{4+i}, v{32+2*i}, v{33+2*i}")
    e("v_and_b32 v20, 15, v0")
    e("v_lshlrev_b32 v20, 1, v20")
    e("v_lshl_add_u32 v20, v2, 7, v20")
    for hf in range(2):
        for c in range(4):
            op = "ds_write_b16_d16_hi" if c & 1 else "ds_write_b16"
            e(f"{op} v20, v{4+2*hf+c//2} offset:{L_Q+hf*512+c*32}")
    e("v_mov_b32 v8, 1")
    e(f"ds_write_b32 v19, v8 offset:{F_QRDY}")
    e("s_branch L_qwok")
    e.label("L_qw")
    e(f"ds_read_b64 v[20:21], v19 offset:{F_QRDY}")
    e("s_waitcnt lgkmcnt(0)")
    e("v_readfirstlane_b32 s40, v21")
    e("v_cmp_eq_u32 vcc, 0, v20")
    e("s_cmp_eq_u32 s100, 0")
    e("s_cbranch_scc1 L_qw2")
    e("s_cmp_eq_u32 s40, 0")
    e("s_cbranch_scc1 L_qw2")
    e("s_mov_b32 s100, 0")
    e("s_waitcnt vmcnt(0)")
    e("global_store_dwordx4 v7, v[12:15], s[58:59] sc1")
    e.label("L_qw2")
    poll_tail("L_qw", "L_qwok", 2)
    e(f"ds_read_b128 v[4:7], v16 offset:{L_Q}")
    e("s_waitcnt vmcnt(0) lgkmcnt(0)")
    stamp("qrecv")
    def dreg(n): return 8 if n == 0 else 64 + 4 * (n - 1)
    for n in range(16):
        d = dreg(n)
        e(f"v_mfma_f32_16x16x32_bf16 v[{d}:{d+3}], v[{64+4*n}:{67+4*n}], v[4:7], 0")
    for k in range(3):
        for n in range(16):
            d = dreg(n); z = n // 4; t = 12 + n % 4
            c = [c for c in range(4) if c != z][k]
            s1 = f"v{d+z}" if k == 0 else f"v{t}"
            e(f"v_add_f32_dpp v{t}, v{d+c}, {s1} row_ror:{4*((z-c)%4)} row_mask:0xf bank_mask:{1<<z:#x}")
    round4(12, 20, 21)
    for i in range(4): e(f"v_mul_f32 v{12+i}, {SCALE:#x}, v{12+i}")
    round4(12, 20, 21)
    e("v_max3_f32 v22, v12, v13, v14")
    e("v_max_f32 v22, v22, v15")
    allred("v_max_f32", 22, 24, lanes16=(4, 8))
    e(f"s_mov_b32 s43, {LOG2E:#x}")
    e("v_mul_f32 v24, s43, v22")
    for i in range(4): e(f"v_fma_f32 v{12+i}, v{12+i}, s43, -v24")
    for i in range(4): e(f"v_exp_f32 v{12+i}, v{12+i}")
    e("v_cvt_pk_bf16_f32 v20, v12, v13")
    e("v_cvt_pk_bf16_f32 v21, v14, v15")
    e(f"ds_write_b64 v18, v[20:21] offset:{L_P}")
    e("v_add_f32 v23, v12, v13")
    e("v_add_f32 v25, v14, v15")
    e("v_add_f32 v23, v23, v25")
    allred("v_add_f32", 23, 24, lanes16=(4, 8))
    e("s_lshl_b32 s42, s10, 3")
    e("v_lshl_add_u32 v24, v3, 6, s42")
    e(f"ds_write_b64 v24, v[22:23] offset:{L_ST}")
    e("s_lshl_b32 s42, s10, 2")
    e("v_mov_b32 v26, s42")
    e("v_mov_b32 v27, 1")
    e(f"ds_write_b32 v26, v27 offset:{F_PF}")
    stamp("smax")
    e("s_setprio 3")
    e("s_cmp_ge_u32 s3, 4")
    e("s_cbranch_scc1 L_owave")
    e("s_cmp_eq_u32 s3, 2")
    e("s_cbranch_scc1 L_fwave")
    e("s_cmp_lt_u32 s3, 2")
    e("s_cbranch_scc1 L_rwave")
    e("s_lshl_b32 s54, s13, 9")
    wsaddr(54, 54, WS_STAT)
    e("v_and_b32 v6, 31, v0")
    e("v_lshlrev_b32 v7, 2, v6")
    e("v_lshlrev_b32 v6, 4, v6")
    e("s_not_b32 s27, s26")
    lds_wait("svi", F_VI, "gt", svi, 19, 2, sleep=2)
    e.label("L_spoll")
    e("global_load_dwordx4 v[40:43], v6, s[54:55] sc1")
    e("s_waitcnt vmcnt(0)")
    untag([40, 41])
    e("v_xor_b32 v42, s26, v42")
    e("v_xor_b32 v43, s27, v43")
    e("v_or_b32 v12, v40, v41")
    e("v_and_b32 v12, 0xff, v12")
    e("v_or3_b32 v12, v12, v42, v43")
    e("v_cmp_ne_u32 vcc, 0, v12")
    poll_tail("L_spoll", "L_sok", sleep=8)
    def red_s(op, r):
        for m in ("quad_perm:[1,0,3,2]", "quad_perm:[2,3,0,1]", "row_half_mirror"):
            e(f"{op}_dpp v{r}, v{r}, v{r} {m} row_mask:0xf bank_mask:0xf")
    e("v_mov_b32 v12, v40")
    red_s("v_max_f32", 12)
    e("v_sub_f32 v12, v40, v12")
    e("v_mul_f32 v12, s43, v12")
    e("v_exp_f32 v12, v12")
    e("v_mul_f32 v14, v12, v41")
    red_s("v_add_f32", 14)
    e("v_rcp_f32 v14, v14")
    e("v_mul_f32 v12, v12, v14")
    e(f"ds_write_b32 v7, v12 offset:{L_FAC}")
    lds_add(F_RP, 27, restore=False)
    stamp("Ostat")
    flush(["gath0", "qrecv", "qn", "Ostat"])

    e.label("L_rwave")
    e("v_and_b32 v1, 7, v0")
    e("v_lshlrev_b32 v1, 2, v1")
    e("v_lshrrev_b32 v3, 5, v0")
    e("s_lshl_b32 s46, s3, 1")
    e("v_add_u32 v3, s46, v3")
    e("v_lshlrev_b32 v4, 6, v3")
    e(f"v_mul_u32_u24 v5, {PARTH}, v3")
    e("v_and_b32 v6, 31, v0")
    e("v_lshl_add_u32 v5, v6, 4, v5")
    e("s_lshl_b32 s46, s4, 5")
    e("s_add_u32 s46, s46, s5")
    e(f"s_mul_i32 s46, s46, {OB1S}")
    e("s_lshl_b32 s47, s3, 10")
    e("s_add_u32 s46, s46, s47")
    wsaddr(46, 46, WS_OB1)
    e("s_lshl_b32 s48, s4, 11")
    e("s_lshl_b32 s49, s5, 4")
    e("s_add_u32 s48, s48, s49")
    wsaddr(48, 48, WS_STAT)
    e("v_lshlrev_b32 v7, 4, v0")
    e("v_lshlrev_b32 v6, 9, v3")
    lds_wait("rpf", F_PF, "eq", 0, 1, 2)
    e(f"ds_read_b32 v2, v19 offset:{F_SX}")
    for i in range(4):
        e(f"ds_read_b128 v[{32+4*i}:{35+4*i}], v4 offset:{L_ST+16*i}")
    e("s_waitcnt lgkmcnt(0)")
    e("v_readfirstlane_b32 s36, v2")
    e("v_max3_f32 v8, v32, v34, v36")
    e("v_max3_f32 v8, v8, v38, v40")
    e("v_max3_f32 v8, v8, v42, v44")
    e("v_max_f32 v8, v8, v46")
    for w in range(8): e(f"v_sub_f32 v{32+2*w}, v{32+2*w}, v8")
    for w in range(8): e(f"v_mul_f32 v{32+2*w}, s43, v{32+2*w}")
    for w in range(8): e(f"v_exp_f32 v{32+2*w}, v{32+2*w}")
    e("v_mul_f32 v9, v32, v33")
    for w in range(1, 8): e(f"v_fmac_f32 v9, v{32+2*w}, v{33+2*w}")
    tag([8, 9])
    e("v_mov_b32 v10, s26")
    e("v_not_b32 v11, v10")
    e("s_mov_b32 s52, 1")
    e("s_mov_b32 s53, 1")
    e("s_mov_b64 exec, s[52:53]")
    e("s_cmp_lg_u32 s36, 0")
    store2("rs", "global_store_dwordx4 v6, v[8:11], s[48:49]")
    e("s_mov_b64 exec, -1")
    if pf1 == 2:
        e("s_cbranch_scc1 L_nopf1")
        e("global_store_dwordx4 v7, v[8:11], s[46:47]")
        e.label("L_nopf1")
    elif pf1: e("global_load_dwordx4 v[100:103], v7, s[46:47] sc1")
    lds_wait("rtk", F_TK, "gt", 8, 19, 2, sleep=1)
    e.label("L_rdone")
    e(f"ds_read_b32 v2, v19 offset:{F_DONE}")
    for w in range(8):
        e(f"ds_read_b128 v[{64+4*w}:{67+4*w}], v5 offset:{L_PART+w*PARTW}")
    e("s_waitcnt lgkmcnt(8)")
    e("v_cmp_gt_u32 vcc, 8, v2")
    poll_tail("L_rdone", "L_rdoneok", 0)
    for w in range(8):
        e(f"s_waitcnt lgkmcnt({7-w})")
        if w == 7: stamp("Rgo")
        for hh in range(2):
            x = f"v[{64+4*w+2*hh}:{65+4*w+2*hh}]"
            acc = f"v[{12+2*hh}:{13+2*hh}]"
            if w == 0:
                e(f"v_pk_mul_f32 {acc}, {x}, v[32:33] op_sel_hi:[1,0]")
            else:
                e(f"v_pk_fma_f32 {acc}, {x}, v[{32+2*w}:{33+2*w}], {acc} op_sel_hi:[1,0,1]")
    e("s_cmp_lg_u32 s36, 0")
    tag([12, 13, 14, 15])
    store2("ro", "global_store_dwordx4 v7, v[12:15], s[46:47]")
    lds_add(F_RP, 27, restore=False)
    stamp("Rpub")
    if stamps:
        e("s_cmp_lg_u32 s3, 0")
        e("s_cbranch_scc1 L_exit")
    flush(["start", "xland", "lndone", "Rgo", "Rpub"])

    e.label("L_owave")
    e("s_sub_u32 s11, s3, 4")
    e("s_lshl_b32 s12, s13, 2")
    e("s_add_u32 s12, s12, s11")
    e("s_mul_i32 s52, s11, 6144")
    e(f"s_add_u32 s52, s52, {L_WO}")
    e("v_lshlrev_b32 v11, 5, v2")
    e("v_lshl_add_u32 v11, v3, 3, v11")
    e("v_add_u32 v11, s52, v11")
    e("v_lshl_add_u32 v10, v17, 7, v11")
    e("v_bfe_u32 v34, v0, 2, 1")
    e("v_lshl_add_u32 v11, v34, 11, v11")
    e("v_bfe_u32 v34, v0, 3, 1")
    e("v_lshl_add_u32 v11, v34, 10, v11")
    e("s_lshl_b32 s42, s7, 7")
    e("s_lshl_b32 s46, s12, 15")
    e("s_add_u32 s46, s46, s42")
    e("s_add_u32 s46, s24, s46")
    e("s_addc_u32 s47, s25, 0")
    e("s_add_u32 s44, s32, s42")
    e("s_addc_u32 s45, s33, 0")
    e("v_lshrrev_b32 v4, 3, v0")
    e("v_and_b32 v30, 7, v0")
    e("v_lshlrev_b32 v30, 4, v30")
    e("v_lshl_add_u32 v31, v4, 10, v30")
    ctg(48, 49)
    e("s_lshl_b32 s48, s48, 6")
    e("s_lshl_b32 s49, s11, 2")
    e("s_add_u32 s48, s48, s49")
    e(f"s_cmp_eq_u32 s14, {NT:#x}")
    e("s_cselect_b32 s48, 0, s48")
    e("v_and_b32 v36, 3, v4")
    e("v_lshrrev_b32 v34, 2, v4")
    e("v_lshl_add_u32 v34, v36, 4, v34")
    e("v_add_u32 v34, s48, v34")
    e("v_lshl_add_u32 v34, v34, 10, v30")
    e("v_add_u32 v35, 2048, v34")
    if tlbw:
        e("s_mov_b64 exec, 1")
        e(f"global_load_dword v90, v31, s[46:47]{wf}")
        e(f"global_load_dword v91, v34, s[44:45]{wf}")
        e("s_mov_b64 exec, -1")
    e("v_bfe_u32 v5, v0, 3, 2")
    e("v_lshrrev_b32 v17, 5, v0")
    e("v_lshlrev_b32 v7, 5, v5")
    e("v_lshl_add_u32 v7, v17, 4, v7")
    e("v_lshlrev_b32 v16, 3, v5")
    e("v_lshl_add_u32 v16, v17, 2, v16")
    e(f"v_mul_u32_u24 v16, {OB1S}, v16")
    e("v_add_u32 v16, v16, v30")
    e("v_bfe_u32 v4, v0, 2, 3")
    e("v_lshlrev_b32 v4, 2, v4")
    e("v_lshl_add_u32 v4, v3, 5, v4")
    e("v_and_b32 v6, 15, v0")
    e("s_lshl_b32 s49, s11, 7")
    e("v_lshl_add_u32 v6, v6, 3, s49")
    e("v_lshlrev_b32 v18, 4, v0")
    e(f"v_add_u32 v26, {L_OR}, v18")
    e("s_lshl_b32 s49, s11, 10")
    e("v_add_u32 v27, s49, v26")
    e("v_mov_b32 v1, 1")
    e("v_lshlrev_b32 v12, 7, v0")
    e("v_mov_b32 v13, s26")
    for i in range(8): e(f"v_mov_b32 v{56+i}, 0")
    e("s_mov_b32 m0, s52")
    if worot == "rb":
        e("s_add_u32 s58, s11, s13")
        e("s_and_b32 s58, s58, 3")
    elif worot == "cs":
        e("s_add_u32 s58, s11, s5")
        e("s_and_b32 s58, s58, 3")
    if wotime:
        lds_wait("wovi", F_VI, "gt", 8, 19, 2, sleep=2)
        e.label("L_wot")
        e("s_sleep 1")
        e("s_memrealtime s[56:57]")
        e("s_waitcnt lgkmcnt(0)")
        e(f"s_sub_u32 s56, s56, s{SB}")
        e(f"s_cmp_lt_u32 s56, {wotime}")
        e("s_cbranch_scc1 L_wot")
    else: lds_wait("wotk", F_TK if t2at == tkat else F_T2, "gt", wodone, 19, 2, sleep=2)
    wf2 = wf if wof is None else ((" " + wof) if wof else "")
    if worot:
        for i in range(4):
            e(f"s_xor_b32 s56, s58, {i}")
            e("s_lshl_b32 s57, s56, 10")
            e("s_add_u32 m0, s52, s57")
            e("s_lshl_b32 s56, s56, 13")
            e("s_add_u32 s56, s46, s56")
            e("s_addc_u32 s57, s47, 0")
            e(f"global_load_lds_dwordx4 v31, s[56:57]{wf2}")
        e("s_add_u32 m0, s52, 4096")
    else:
        for i in range(4):
            e(f"global_load_lds_dwordx4 v31, s[46:47]{wf2}")
            e("s_add_u32 m0, m0, 1024")
            if i < 3:
                e(f"s_add_u32 s46, s46, 8192")
                e(f"s_addc_u32 s47, s47, 0")
    e(f"s_cmp_eq_u32 s14, {NT:#x}")
    e("s_cbranch_scc1 L_nowd")
    e(f"global_load_lds_dwordx4 v34, s[44:45]{wf2}")
    e("s_add_u32 m0, m0, 1024")
    e(f"global_load_lds_dwordx4 v35, s[44:45]{wf2}")
    e.label("L_nowd")
    e(f"s_mul_i32 s44, s4, {32*OB1S}")
    e("s_and_b32 s45, s12, 15")
    e("s_lshl_b32 s45, s45, 7")
    e("s_add_u32 s44, s44, s45")
    wsaddr(44, 44, WS_OB1 + 3 * OB1S // 2)
    e("s_lshl_b32 s46, s7, 5")
    e("s_add_u32 s46, s46, s13")
    e(f"s_mul_i32 s46, s46, {OB2S}")
    wsaddr(46, 46, WS_OB2)
    e("s_lshl_b32 s50, s7, 12")
    e("s_add_u32 s50, s50, s13" if hmode == 1 else "s_add_u32 s50, s50, s4")
    wsaddr(50, 50, WS_HF2)
    e("s_mov_b32 s54, -1")
    e("s_mov_b32 s55, 0")
    if hmode == 2:
        e("s_cmp_eq_u32 s6, 0")
        e("s_cselect_b32 s49, 3, 99")
    else:
        e("s_mov_b32 s49, %d" % (3 if hmode else 99))
    lds_wait("orp", F_RP, "gt", 4, 19, 2, sleep=1)
    def oloads(base=40):
        for i in range(4):
            e(f"global_load_dwordx4 v[{base+4*i}:{base+3+4*i}], v16, s[44:45] offset:{i*OB1S-3*OB1S//2} sc1")
    def ocheck(base, pend):
        for i in range(4):
            e(f"s_waitcnt vmcnt({3-i+pend})")
            b = base + 4 * i
            untag(range(b, b + 4))
            for hh in range(2):
                x = f"v[{b+2*hh}:{b+1+2*hh}]"
                acc = f"v[{20+2*hh}:{21+2*hh}]"
                fp = f"v[{32+2*(i//2)}:{33+2*(i//2)}]"
                if i == 0: e(f"v_pk_mul_f32 {acc}, {x}, {fp} op_sel_hi:[1,0]")
                elif i % 2 == 0: e(f"v_pk_fma_f32 {acc}, {x}, {fp}, {acc} op_sel_hi:[1,0,1]")
                else: e(f"v_pk_fma_f32 {acc}, {x}, {fp}, {acc} op_sel:[0,1,0] op_sel_hi:[1,1,1]")
            if i == 0:
                e(f"v_or3_b32 v28, v{b}, v{b+1}, v{b+2}")
                e(f"v_or_b32 v28, v28, v{b+3}")
            else:
                e(f"v_or3_b32 v28, v28, v{b}, v{b+1}")
                e(f"v_or3_b32 v28, v28, v{b+2}, v{b+3}")
        e("v_and_b32 v28, 0xff, v28")
        e("v_cmp_ne_u32 vcc, 0, v28")
        e("s_cbranch_vccz L_ook")
        e("s_mov_b64 exec, vcc")
    oloads()
    stamp("Ogo")
    if stamps: e("s_mov_b32 s53, s15")
    e(f"ds_read_b128 v[32:35], v7 offset:{L_FAC}")
    e(f"ds_read_b64 v[38:39], v6 offset:{L_H}")
    e("s_waitcnt vmcnt(4)")
    for n in range(4):
        e(f"ds_read_b64_tr_b16 v[{64+2*n}:{65+2*n}], v10 offset:{4096+n*512}")
    for n in range(8):
        e(f"ds_read_b64_tr_b16 v[{96+2*n}:{97+2*n}], v11 offset:{n*128}")
    e("s_waitcnt lgkmcnt(0)" if stamps else "s_waitcnt lgkmcnt(8)")
    for n in range(4):
        acc = f"v[{56+4*(n%2)}:{59+4*(n%2)}]"
        if n == 0:
            e(f"s_cmp_eq_u32 s14, {NT:#x}")
            e("s_cbranch_scc1 L_ochk")
        e(f"v_mfma_f32_4x4x4_16b_bf16 {acc}, v[38:39], v[{64+2*n}:{65+2*n}], {acc} cbsz:4 abid:{n}")
    if opipe:
        e.label("L_ochk")
        oloads(72)
        ocheck(40, 4)
        oloads(40)
        ocheck(72, 4)
        e("s_sub_u32 s15, s15, 1")
        e("s_cbranch_scc0 L_ochk")
        e("s_mov_b32 s15, 0")
    else:
        e("s_branch L_ochk")
        e.label("L_opoll")
        if osleep: e(f"s_sleep {osleep}")
        oloads()
        e.label("L_ochk")
        ocheck(40, 0)
        e("s_sub_u32 s15, s15, 1")
        e("s_cbranch_scc0 L_opoll")
        e("s_mov_b32 s15, 0")
    e.label("L_ook")
    e("s_mov_b64 exec, 1")
    e(f"ds_add_rtn_u32 v2, v19, v1 offset:{F_GT}")
    e("s_mov_b64 exec, -1")
    stamp("h1")
    count("h1n", 53)
    e("v_permlane32_swap_b32 v20, v21")
    e("v_permlane32_swap_b32 v22, v23")
    e("v_add_f32 v20, v20, v21")
    e("v_add_f32 v22, v22, v23")
    e("v_cvt_pk_bf16_f32 v20, v20, v22")
    e("ds_bpermute_b32 v24, v4, v20")
    e("ds_bpermute_b32 v25, v4, v20 offset:128")
    e("s_waitcnt lgkmcnt(2)")
    e("v_readfirstlane_b32 s48, v2")
    e("s_cmp_lg_u32 s48, s49")
    e("s_cbranch_scc1 L_nohint2")
    e("s_mov_b64 exec, s[54:55]")
    e("global_store_byte v12, v13, s[50:51] sc1")
    e("s_mov_b64 exec, -1")
    e.label("L_nohint2")
    e("s_waitcnt lgkmcnt(0)")
    for n in range(8):
        acc = f"v[{56+4*(n%2)}:{59+4*(n%2)}]"
        e(f"v_mfma_f32_4x4x4_16b_bf16 {acc}, v[24:25], v[{96+2*n}:{97+2*n}], {acc} cbsz:4 abid:{n}")
    e("v_pk_add_f32 v[56:57], v[56:57], v[60:61]")
    e("v_pk_add_f32 v[58:59], v[58:59], v[62:63]")
    e("ds_write_b128 v27, v[56:59]")
    e("s_mov_b64 exec, 1")
    e(f"ds_add_rtn_u32 v2, v19, v1 offset:{F_OT}")
    e("s_mov_b64 exec, -1")
    for i in range(4):
        e(f"ds_read_b128 v[{112+4*i}:{115+4*i}], v26 offset:{1024*i}")
    e("s_waitcnt lgkmcnt(4)")
    e("v_readfirstlane_b32 s48, v2")
    e("s_cmp_lg_u32 s48, 3")
    e("s_cbranch_scc1 L_exit")
    e("s_waitcnt lgkmcnt(2)")
    e("v_pk_add_f32 v[112:113], v[112:113], v[116:117]")
    e("v_pk_add_f32 v[114:115], v[114:115], v[118:119]")
    e("s_waitcnt lgkmcnt(0)")
    e("v_pk_add_f32 v[120:121], v[120:121], v[124:125]")
    e("v_pk_add_f32 v[122:123], v[122:123], v[126:127]")
    e("v_pk_add_f32 v[112:113], v[112:113], v[120:121]")
    e("v_pk_add_f32 v[114:115], v[114:115], v[122:123]")
    tag([112, 113, 114, 115])
    e("global_store_dwordx4 v18, v[112:115], s[46:47] sc1")
    e(f"ds_write_b32 v19, v1 offset:{F_ODONE}")
    stamp("Opub")
    flush(["kissued", "smax", "Ogo", "h1", "h1n", "Opub"])

    e.label("L_fwave")
    e("s_lshl_b32 s40, s13, 13")
    wsaddr(40, 40, WS_GP + 4096)
    e("v_lshlrev_b32 v20, 4, v0")
    e("s_lshl_b32 s44, s4, 7")
    e("s_lshl_b32 s45, s5, 2")
    e("s_add_u32 s44, s44, s45")
    e("v_and_b32 v3, 1, v0")
    e("v_lshl_add_u32 v4, v3, 1, s44")
    e("v_bfe_u32 v5, v0, 4, 1")
    e("v_lshl_add_u32 v4, v5, 11, v4")
    e("v_lshrrev_b32 v5, 5, v0")
    e("v_lshl_add_u32 v4, v5, 10, v4")
    e("global_load_ushort v6, v4, s[16:17]")
    if tlbo: e("global_load_ushort v90, v4, s[34:35]")
    e(f"s_cmp_eq_u32 s14, {NT:#x}")
    e("s_cbranch_scc1 L_noh")
    gather32("hpoll", [f"global_load_dwordx4 v[{32+4*i}:{35+4*i}], v20, s[40:41] offset:{1024*i-4096} sc1" for i in range(8)], None, 8)
    stamp("Oh")
    sum4()
    round4(32, 8, 9)
    round4(36, 8, 9)
    e("v_pk_mul_f32 v[32:33], v[32:33], v[36:37]")
    e("v_pk_mul_f32 v[34:35], v[34:35], v[38:39]")
    e("v_cvt_pk_bf16_f32 v32, v32, v33")
    e("v_cvt_pk_bf16_f32 v33, v34, v35")
    e("v_and_b32 v21, 15, v0")
    e("v_lshlrev_b32 v21, 5, v21")
    e("v_lshl_add_u32 v21, v2, 3, v21")
    e(f"ds_write_b64 v21, v[32:33] offset:{L_H}")
    e.label("L_noh")
    lds_add(F_RP, 27)
    e("s_waitcnt vmcnt(0)")
    e("v_lshlrev_b32 v6, 16, v6")
    e("v_lshrrev_b32 v8, 1, v0")
    e(f"v_mul_u32_u24 v8, {OB2S}, v8")
    e("v_lshl_add_u32 v8, v3, 4, v8")
    e(f"s_mul_i32 s46, s4, {32*OB2S}")
    e("s_lshl_b32 s47, s5, 5")
    e("s_add_u32 s46, s46, s47")
    wsaddr(46, 46, WS_OB2)
    e("s_mov_b32 s48, 0x00030003")
    e("s_mov_b32 s49, 0x00030003")
    e(f"v_mov_b32 v12, {WS_EP:#x}")
    e("v_mov_b32 v13, s26")
    e("s_lshl_b32 s50, s4, 5")
    e("s_add_u32 s50, s50, s5")
    e("s_lshl_b32 s50, s50, 7")
    wsaddr(50, 50, WS_HF2)
    e(f"s_mul_i32 s66, s{TG}, 0x01010101")
    e("s_mov_b32 s67, s66")
    if fgate == 'rp': lds_wait("frp", F_RP, "gt", 4, 19, 2, sleep=2)
    else: lds_wait("frp", F_GT, "gt", fgate, 19, 2, sleep=1)
    if hmode:
        e.label("L_hw2")
        if hmode == 1:
            e("s_load_dwordx8 s[56:63], s[50:51], 0 glc")
            e("s_waitcnt lgkmcnt(0)")
            for i in range(4): e(f"s_xor_b64 s[{56+2*i}:{57+2*i}], s[{56+2*i}:{57+2*i}], s[66:67]")
            e("s_or_b64 s[56:57], s[56:57], s[58:59]")
            e("s_or_b64 s[60:61], s[60:61], s[62:63]")
            e("s_or_b64 s[56:57], s[56:57], s[60:61]")
        else:
            e("s_load_dwordx2 s[56:57], s[50:51], 0 glc")
            e("s_waitcnt lgkmcnt(0)")
            e("s_cmp_lg_u64 s[56:57], s[66:67]")
        e("s_cbranch_scc0 L_hw2ok")
        e("s_sub_u32 s15, s15, 1")
        e("s_cbranch_scc0 L_hw2")
        e("s_mov_b32 s15, 0")
        e.label("L_hw2ok")
    if d2: e(f"s_sleep {d2}")
    lds_wait("fod", F_ODONE, "eq", 0, 19, 2, sleep=0)
    if stamps: e("s_mov_b32 s53, s15")
    e.label("L_fpoll")
    e(f"global_load_dwordx4 v[20:23], v8, s[46:47] {fld}")
    e("s_waitcnt vmcnt(0)")
    stamp("h2")
    untag(range(20, 24))
    e("v_or3_b32 v28, v20, v21, v22")
    e("v_or_b32 v28, v28, v23")
    e("v_and_b32 v28, 0xff, v28")
    e("v_cmp_ne_u32 vcc, 0, v28")
    e("s_cbranch_vccz L_fok")
    e("s_mov_b64 exec, vcc")
    if fsleep: e(f"s_sleep {fsleep}")
    e("s_sub_u32 s15, s15, 1")
    e("s_cbranch_scc0 L_fpoll")
    e("s_mov_b32 s15, 0")
    e.label("L_fok")
    e("s_mov_b64 exec, -1")
    e("v_permlane32_swap_b32 v20, v21")
    e("v_permlane32_swap_b32 v22, v23")
    e("v_add_f32 v20, v20, v21")
    e("v_add_f32 v22, v22, v23")
    e("v_permlane16_swap_b32 v20, v22")
    e("v_add_f32 v20, v20, v22")
    count("h2n", 53)
    for sh in (2, 4, 8):
        e(f"v_add_f32_dpp v20, v20, v20 row_ror:{sh} row_mask:0xf bank_mask:0xf")
    e("v_add_f32 v20, v20, v6")
    e("v_cvt_pk_bf16_f32 v20, v20, v20")
    e("s_mov_b64 exec, s[48:49]")
    e("global_store_short v4, v20, s[34:35]")
    e("s_cmp_lg_u32 s2, 0")
    e("s_cbranch_scc1 L_fend")
    e("s_mov_b64 exec, 1")
    e("global_store_dword v12, v13, s[38:39]")
    e.label("L_fend")
    if padto:
        e.label("L_pad")
        e("s_memrealtime s[74:75]")
        e("s_waitcnt lgkmcnt(0)")
        e("s_sub_u32 s74, s74, s72")
        e(f"s_cmp_lt_u32 s74, {padto*100}")
        e("s_cbranch_scc1 L_pad")
    if stamps:
        e("s_waitcnt vmcnt(0)")
        stamp("end")
    flush(["wland", "qpub", "Oh", "h2", "h2n", "end"])

    e.label("L_ln")
    e("s_waitcnt vmcnt(0)")
    stamp("xland")
    for i in range(16):
        e(f"v_lshlrev_b32 v{80+2*i}, 16, v{64+i}")
        e(f"v_and_b32 v{81+2*i}, 0xffff0000, v{64+i}")
    e("v_pk_add_f32 v[20:21], v[80:81], v[82:83]")
    e("v_pk_add_f32 v[22:23], v[84:85], v[86:87]")
    for i in range(4, 16):
        acc = 20 + 2 * (i % 2)
        e(f"v_pk_add_f32 v[{acc}:{acc+1}], v[{acc}:{acc+1}], v[{80+2*i}:{81+2*i}]")
    e("v_pk_add_f32 v[20:21], v[20:21], v[22:23]")
    e("v_add_f32 v20, v20, v21")
    for sh in (8, 4, 2, 1):
        e(f"v_add_f32_dpp v20, v20, v20 row_ror:{sh} row_mask:0xf bank_mask:0xf")
    e("v_mul_f32 v20, 0x3b000000, v20")
    e("v_cvt_pk_bf16_f32 v22, v20, v20")
    e("v_lshlrev_b32 v22, 16, v22")
    e("v_sub_f32 v24, v20, v22")
    for i in range(16):
        e(f"v_pk_add_f32 v[{80+2*i}:{81+2*i}], v[{80+2*i}:{81+2*i}], v[22:23] op_sel_hi:[1,0] neg_lo:[0,1] neg_hi:[0,1]")
    e("v_pk_mul_f32 v[26:27], v[80:81], v[80:81]")
    e("v_pk_mul_f32 v[28:29], v[82:83], v[82:83]")
    for i in range(2, 16):
        acc = 26 + 2 * (i % 2)
        e(f"v_pk_fma_f32 v[{acc}:{acc+1}], v[{80+2*i}:{81+2*i}], v[{80+2*i}:{81+2*i}], v[{acc}:{acc+1}]")
    e("v_pk_add_f32 v[26:27], v[26:27], v[28:29]")
    e("v_add_f32 v26, v26, v27")
    for sh in (8, 4, 2, 1):
        e(f"v_add_f32_dpp v26, v26, v26 row_ror:{sh} row_mask:0xf bank_mask:0xf")
    e("v_mul_f32 v26, 0x3b000000, v26")
    e("v_fma_f32 v26, -v24, v24, v26")
    e("v_max_f32 v26, 0, v26")
    def r1(r):
        e(f"v_cvt_pk_bf16_f32 v{r}, v{r}, v{r}")
        e(f"v_lshlrev_b32 v{r}, 16, v{r}")
    r1(26)
    e("v_add_f32 v26, 0x3727c5ac, v26")
    r1(26)
    e("v_sqrt_f32 v26, v26")
    r1(26)
    e("v_rcp_f32 v26, v26")
    round4(80, 64, 65)
    round4(84, 66, 67)
    for i in range(4):
        e(f"v_pk_mul_f32 v[{80+2*i}:{81+2*i}], v[{80+2*i}:{81+2*i}], v[26:27] op_sel_hi:[1,0]")
    for i in range(4):
        e(f"v_cvt_pk_bf16_f32 v{20+i}, v{80+2*i}, v{81+2*i}")
    e("v_lshlrev_b32 v2, 4, v0")
    e(f"ds_write_b128 v2, v[20:23] offset:{L_XN}")
    e("v_mov_b32 v1, 1")
    e(f"ds_write_b32 v19, v1 offset:{F_XN}")
    stamp("lndone")
    e("s_branch L_kpart")

    e.label("L_tileg")
    e("v_lshlrev_b32 v7, 4, v0")
    e("v_lshrrev_b32 v1, 4, v0")
    e("s_lshl_b32 s58, s4, 2")
    e("s_add_u32 s58, s58, s6")
    e("s_lshl_b32 s58, s58, 3")
    e("s_lshl_b32 s57, s42, 1")
    e("s_add_u32 s58, s58, s57")
    e("s_add_u32 s58, s58, s55")
    e("s_lshl_b32 s58, s58, 10")
    e(f"s_add_u32 s58, s58, {WS_GP:#x}")
    e(f"s_movk_i32 s45, {L_W}")
    e(f"v_mov_b32 v10, {F_JUNK}")
    e("s_branch L_tile")
    e.label("L_tileq")
    e("v_and_b32 v3, 15, v0")
    e("v_lshrrev_b32 v1, 4, v0")
    e("v_lshlrev_b32 v7, 11, v1")
    e("v_lshl_add_u32 v7, v3, 4, v7")
    e("s_lshl_b32 s58, s4, 15")
    e("s_lshl_b32 s53, s42, 13")
    e("s_add_u32 s58, s58, s53")
    e("s_lshl_b32 s53, s43, 8")
    e("s_add_u32 s58, s58, s53")
    e(f"s_mov_b32 s45, {L_W+16384}")
    e(f"v_mov_b32 v10, {F_QPUB}")
    e.label("L_tile")
    e("v_lshrrev_b32 v4, 2, v0")
    e("v_lshlrev_b32 v4, 7, v4")
    e("v_and_b32 v5, 3, v0")
    e("v_lshl_add_u32 v4, v5, 3, v4")
    e("v_add_u32 v4, s45, v4")
    e("v_bfe_u32 v8, v0, 2, 2")
    e("v_lshlrev_b32 v6, 8, v8")
    e("v_lshl_add_u32 v6, v1, 3, v6")
    e(f"v_add_u32 v6, {L_XN}, v6")
    wsaddr(58, 58, 0)
    e("v_mov_b32 v11, 1")
    e("s_waitcnt lgkmcnt(0)")
    make_tag()
    xtags(60, only_wave=2)
    e("s_waitcnt vmcnt(0)")
    stamp("wland")
    for c in range(4):
        for m in range(4):
            b = 64 + 16 * c + 4 * m
            e(f"ds_read_b64_tr_b16 v[{b}:{b+1}], v4 offset:{m*4096+c*32}")
            e(f"ds_read_b64_tr_b16 v[{b+2}:{b+3}], v4 offset:{m*4096+2048+c*32}")
    lds_wait("xnw", F_XN, "eq", 0, 19, 9, sleep=1)
    for m in range(4):
        e(f"ds_read2_b64 v[{32+4*m}:{35+4*m}], v6 offset0:{8*m} offset1:{8*m+4}")
    for m in range(4):
        e(f"s_waitcnt lgkmcnt({3-m})")
        for c in range(4):
            b = 64 + 16 * c + 4 * m
            acc = f"v[{48+4*c}:{51+4*c}]"
            e(f"v_mfma_f32_16x16x32_bf16 {acc}, v[{32+4*m}:{35+4*m}], v[{b}:{b+3}], {'0' if m == 0 else acc}")
    for c in range(4):
        e(f"v_add_u32 v{12+c}, 0x80, v{48+4*c}")
    tag([12, 13, 14, 15], 60)
    e("global_store_dwordx4 v7, v[12:15], s[58:59]" + (" " + lst if lst else ""))
    e("ds_write_b32 v10, v11")
    e("s_mov_b32 s100, 1")
    stamp("qpub")
    e("s_branch L_kpart")
    e.label("L_codeend")

    txt = wrap(e.text(), 256, 1024, LDS_BYTES, 128, sgpr=102)
    build(txt, name)
    if out_path:
        open(out_path, "w").write(txt)
    return txt

DOC = """; ---------------------------------------------------------------------------------------------
;
; ---------------------------------------------------------------------------------------------
"""
if __name__ == "__main__":
    txt = gen("k33")
    gen("k33_st", stamps=True)
    gen("k33x", forcex=True)
    hdr = open('parallel_sum__gqa_block_cached__glu_gated_bilinear__decode.s.ref').read().split("; Override launch geometry")[0]
    open('parallel_sum__gqa_block_cached__glu_gated_bilinear__decode.s','w').write(hdr + DOC + txt)
```

```python
import sys
from asmlib import *
from emit import Emitter

WS_QP, WS_EP, WS_STAT, WS_GP, WS_OB1, WS_OB2, WS_HF2 = 0, 0x40000, 0x44000, 0x48000, 0x90000, 0x120000, 0x190000
OB1S, OB2S = 2304, 1280
F_QPUB, F_QRDY, F_ODONE, F_DONE, F_JUNK, F_OT, F_XN, F_RP, F_PF, F_VI, F_TK, F_SX, F_GT, F_T2, L_FAC = 0, 88, 8, 12, 16, 20, 24, 28, 32, 64, 72, 76, 80, 84, 128
F_MIX = 92
L_ST, L_Q, L_P, L_XN, L_H, L_PART, L_W, L_WO = 0x100, 0x200, 0x600, 0x1800, 0x1c00, 0x2000, 0x6400, 0xE400
PARTW, PARTH = 2176, 544
L_OR = L_WO + 4 * 6144
LDS_BYTES = L_OR + 4096
NSTAMP = 24
SB = 72
LOG2E = 0x3FB8AA3B
SCALE = 0x3DB504F3
TIMEOUT = 1 << 20
STN = ["start", "xland", "lndone", "wland", "qpub", "kissued", "gath0", "qrecv", "smax", "Oh", "Ostat", "Ogo", "Vissued", "Vland",
       "Rgo", "Rpub", "h1", "Opub", "h2", "end", "h1r1", "h1n", "h2n", "qn"]

def gen(name, stamps=False, kvflags="nt", wflags="nt", out_path=None, g1=0, osleep=0, prefsplit=True,
        pf1=0, svi=3, wodone=8, tkat=14, forcex=False, d2=0, hmode=2, fld='sc0 sc1', fsleep=0, t2at=8, padto=0, fgate=4, opipe=False, wotime=0, worot=None, wof=None, tlbw=False, tlbo=False, mixafter=3, earlybar=False, wrot=False, lst='', kfl=None, vfl=None, light='hi'):
    e = Emitter()
    NT = {'odd': 0xc1, 'hi': 0xc4}[light]
    kvf = (" " + kvflags) if kvflags else ""
    wf = (" " + wflags) if wflags else ""
    order = {"start":0, "xland":1, "lndone":2, "wland":3, "qpub":4, "kissued":5, "gath0":1, "qrecv":6, "smax":7, "Oh":1, "Ostat":2,
             "Ogo":3, "Vissued":1, "Vland":2, "Rgo":8, "Rpub":9, "h1":8, "Opub":9, "h2":8, "end":9, "h1r1":10, "h1n":11, "h2n":11, "qn":11}
    def sreg(nm): return SB + 2 * order[nm]
    def stamp(nm):
        if stamps: e(f"s_memrealtime s[{sreg(nm)}:{sreg(nm)+1}]")
    def count(nm, s_from):
        if stamps:
            e("s_waitcnt lgkmcnt(0)")
            e(f"s_sub_u32 s{s_from}, s{s_from}, s15")
            e(f"s_mul_i32 s{s_from}, s{s_from}, 100")
            e(f"s_add_u32 s{sreg(nm)}, s{SB}, s{s_from}")
            e(f"s_addc_u32 s{sreg(nm)+1}, s{SB+1}, 0")
    def flush(nms):
        if stamps and nms:
            e("s_mov_b64 exec, -1")
            e("s_waitcnt vmcnt(0) lgkmcnt(0)")
            e(f"s_mul_i32 s40, s2, {NSTAMP*8}")
            e("s_add_u32 s40, s40, 0x8000000")
            e("s_add_u32 s40, s38, s40")
            e("s_addc_u32 s41, s39, 0")
            e("v_mov_b32 v1, 0")
            for nm in nms:
                e(f"v_mov_b32 v2, s{sreg(nm)}")
                e(f"v_mov_b32 v3, s{sreg(nm)+1}")
                e(f"global_store_dwordx2 v1, v[2:3], s[40:41] offset:{8*STN.index(nm)}")
                e("s_nop 1")
        e("s_endpgm")

    def allred(op, r, t, lanes16=(1, 2, 4, 8)):
        for sh in lanes16:
            e(f"{op}_dpp v{r}, v{r}, v{r} row_ror:{sh} row_mask:0xf bank_mask:0xf")
        for sw in ("v_permlane16_swap_b32", "v_permlane32_swap_b32"):
            e(f"v_mov_b32 v{t}, v{r}")
            e(f"{sw} v{r}, v{t}")
            e(f"{op} v{r}, v{r}, v{t}")

    def poll_tail(lbl_loop, lbl_done, sleep=2):
        e(f"s_cbranch_vccz {lbl_done}")
        if sleep: e(f"s_sleep {sleep}")
        e("s_sub_u32 s15, s15, 1")
        e(f"s_cbranch_scc0 {lbl_loop}")
        e("s_mov_b32 s15, 0")
        e.label(lbl_done)

    def lds_wait(tag, off, cmp, val, vaddr, vt, sleep=2):
        e.label(f"L_{tag}")
        e(f"ds_read_b32 v{vt}, v{vaddr} offset:{off}")
        e("s_waitcnt lgkmcnt(0)")
        e(f"v_cmp_{cmp}_u32 vcc, {val}, v{vt}")
        poll_tail(f"L_{tag}", f"L_{tag}ok", sleep)

    def lds_add(off, vval, vzero=19, restore=True):
        e("s_mov_b64 exec, 1")
        e(f"ds_add_u32 v{vzero}, v{vval} offset:{off}")
        if restore: e("s_mov_b64 exec, -1")

    def wsaddr(sd, soff, const):
        if const: e(f"s_add_u32 s{sd}, s{soff}, {const:#x}")
        elif sd != soff: e(f"s_mov_b32 s{sd}, s{soff}")
        e(f"s_add_u32 s{sd}, s38, s{sd}")
        e(f"s_addc_u32 s{sd+1}, s39, 0")

    def kvloads(sb, va):
        o = kfl if sb == 18 else vfl
        kvf = ((" " + kvflags) if kvflags else "") if o is None else ((" " + o) if o else "")
        e(f"s_add_u32 s68, s{sb}, s9")
        e(f"s_addc_u32 s69, s{sb+1}, 0")
        e("s_movk_i32 s70, 0x4000")
        e("s_mov_b32 s71, 0x00020000")
        for n in range(16):
            e(f"s_xor_b32 s8, s11, {n<<10}")
            e(f"buffer_load_dwordx4 v[{64+4*n}:{67+4*n}], v{va}, s[68:71], s8 offen{kvf}")

    TG = 96
    def make_tag():
        e("s_add_u32 s26, s37, 1")
        for i, c in enumerate((0, 0x35, 0x5a, 0x6f)):
            if c: e(f"s_add_u32 s{TG+i}, s26, {c:#x}")
            e(f"s_and_b32 s{TG+i}, s{TG+i if c else 26}, 0xff")
        e("v_mov_b32 v29, 0xffffff00")

    def xtags(base, only_wave=None):
        e("s_getreg_b32 s36, hwreg(HW_REG_XCC_ID, 0, 4)")
        if only_wave is not None:
            e(f"s_cmp_eq_u32 s3, {only_wave}")
            e("s_cselect_b32 s36, s36, 0")
        for i in range(4):
            e(f"s_lshl_b32 s{base+i}, s36, {7-i}")
            e(f"s_and_b32 s{base+i}, s{base+i}, 0x80")
            e(f"s_xor_b32 s{base+i}, s{base+i}, s{TG+i}")

    def tag(regs, base=None):
        for r in regs: e(f"v_and_or_b32 v{r}, v{r}, v29, s{(TG if base is None else base) + r % 4}")

    def untag(regs, base=None):
        for r in regs: e(f"v_xor_b32 v{r}, s{(TG if base is None else base) + r % 4}, v{r}")

    def or_all(regs, t, mask=0xff):
        e(f"v_or3_b32 v{t}, v{regs[0]}, v{regs[1]}, v{regs[2]}")
        rest = regs[3:]
        while len(rest) >= 2:
            e(f"v_or3_b32 v{t}, v{t}, v{rest[0]}, v{rest[1]}"); rest = rest[2:]
        if rest: e(f"v_or_b32 v{t}, v{t}, v{rest[0]}")
        if mask is not None: e(f"v_and_b32 v{t}, {mask:#x}, v{t}")

    def gather32(tagname, loads, xt, sleep, mix=False):
        if stamps: e("s_mov_b32 s53, s15")
        e.label(f"L_{tagname}")
        for l in loads: e(l)
        e("s_waitcnt vmcnt(0)")
        untag(range(32, 64), xt)
        or_all(list(range(32, 64)), 9, None)
        e(f"v_and_b32 v8, {0xff if xt is None else 0x7f:#x}, v9")
        e("v_cmp_ne_u32 vcc, 0, v8")
        e(f"s_cbranch_vccz L_{tagname}ok")
        e("s_mov_b64 exec, vcc")
        if mix:
            e("s_sub_u32 s48, s48, 1")
            e(f"s_cbranch_scc0 L_{tagname}m")
            e(f"ds_write_b32 v19, v10 offset:{F_MIX}")
            e("s_sleep 8")
            e.label(f"L_{tagname}m")
        if sleep: e(f"s_sleep {sleep}")
        e("s_sub_u32 s15, s15, 1")
        e(f"s_cbranch_scc0 L_{tagname}")
        e("s_mov_b32 s15, 0")
        e.label(f"L_{tagname}ok")
        e("s_mov_b64 exec, -1")

    def sum4():
        for i in range(4):
            e(f"v_pk_add_f32 v[{32+2*i}:{33+2*i}], v[{32+2*i}:{33+2*i}], v[{40+2*i}:{41+2*i}]")
            e(f"v_pk_add_f32 v[{48+2*i}:{49+2*i}], v[{48+2*i}:{49+2*i}], v[{56+2*i}:{57+2*i}]")
        for i in range(4):
            e(f"v_pk_add_f32 v[{32+2*i}:{33+2*i}], v[{32+2*i}:{33+2*i}], v[{48+2*i}:{49+2*i}]")

    def round4(base, c0, c1):
        e(f"v_cvt_pk_bf16_f32 v{c0}, v{base}, v{base+1}")
        e(f"v_cvt_pk_bf16_f32 v{c1}, v{base+2}, v{base+3}")
        e(f"v_lshlrev_b32 v{base}, 16, v{c0}")
        e(f"v_and_b32 v{base+1}, 0xffff0000, v{c0}")
        e(f"v_lshlrev_b32 v{base+2}, 16, v{c1}")
        e(f"v_and_b32 v{base+3}, 0xffff0000, v{c1}")

    def ctg(d, t):
        if light == 'odd':
            e(f"s_lshr_b32 s{d}, s4, 1")
            e(f"s_mul_i32 s{d}, s{d}, 7")
            e(f"s_and_b32 s{t}, s4, 1")
            e(f"s_lshl_b32 s{t}, s{t}, 2")
            e(f"s_add_u32 s{d}, s{d}, s{t}")
        else:
            e(f"s_mul_i32 s{d}, s4, 3")
            e(f"s_min_u32 s{t}, s4, 4")
            e(f"s_add_u32 s{d}, s{d}, s{t}")
        e(f"s_lshr_b32 s{t}, s5, 3")
        e(f"s_add_u32 s{d}, s{d}, s{t}")

    def store2(lbl, txt):
        e(f"s_cbranch_scc1 L_{lbl}a")
        e(txt + (" " + lst if lst else ""))
        e(f"s_branch L_{lbl}b")
        e.label(f"L_{lbl}a")
        e(txt + " sc1")
        e.label(f"L_{lbl}b")

    e("s_load_dwordx16 s[16:31], s[0:1], 0")
    e("s_load_dwordx8 s[32:39], s[0:1], 64")
    e("s_cmp_ge_u32 s2, 256")
    e("s_cbranch_scc1 L_exit")
    e("v_lshrrev_b32 v1, 6, v0")
    e("s_lshr_b32 s5, s2, 3")
    e("v_readfirstlane_b32 s3, v1")
    e("s_getpc_b64 s[40:41]")
    e.label("L_pc")
    if prefsplit:
        e("s_xor_b32 s4, s3, s5")
        e("s_and_b32 s4, s4, 3")
        e("s_cbranch_scc1 L_nopf")
    e("v_lshlrev_b32 v1, 4, v0")
    e("v_min_u32 v1, L_codeend-L_pc-4, v1")
    e("global_load_dword v63, v1, s[40:41]")
    e.label("L_nopf")
    stamp("start")
    if padto: e("s_memrealtime s[72:73]")
    e("v_and_b32 v0, 63, v0")
    e("s_and_b32 s4, s2, 7")
    e("s_and_b32 s42, s5, 3")
    e("s_lshr_b32 s43, s5, 2")
    e("v_lshrrev_b32 v4, 3, v0")
    e("v_and_b32 v5, 7, v0")
    e(f"s_and_b32 s14, s2, {NT:#x}")
    e("s_cmp_gt_u32 s3, 2")
    e("s_cbranch_scc1 L_pro2")
    e("s_setprio 3")
    if earlybar: e("s_barrier")
    e("s_cmp_lt_u32 s3, 2")
    e("s_cbranch_scc1 L_early")
    e("s_lshl_b32 s46, s42, 20")
    e("s_lshl_b32 s47, s4, 10")
    e("s_add_u32 s46, s46, s47")
    e("s_lshl_b32 s47, s43, 7")
    e("s_add_u32 s46, s46, s47")
    e("v_lshlrev_b32 v4, 13, v4")
    e(f"s_mov_b32 m0, {L_W+16384}")
    e("s_waitcnt lgkmcnt(0)")
    e("s_add_u32 s40, s22, s46")
    e("s_addc_u32 s41, s23, 0")
    e("s_mov_b32 s46, 0x10000")
    e.label("L_dma0")
    e("v_lshl_add_u32 v4, v5, 4, v4")
    e("s_mov_b32 s48, 16")
    if wrot:
        e("s_mov_b32 s49, m0")
        e("s_lshl_b32 s50, s5, 2")
        e("s_add_u32 s50, s50, s43")
        e("s_add_u32 s50, s50, s4")
        e.label("L_dma")
        e("s_add_u32 s51, s48, s50")
        e("s_and_b32 s51, s51, 15")
        e("s_lshl_b32 s52, s51, 10")
        e("s_add_u32 m0, s49, s52")
        e("s_mul_i32 s51, s51, s46")
        e("s_add_u32 s52, s40, s51")
        e("s_addc_u32 s53, s41, 0")
        e(f"global_load_lds_dwordx4 v4, s[52:53]{wf}")
    else:
        e.label("L_dma")
        e(f"global_load_lds_dwordx4 v4, s[40:41]{wf}")
        e("s_add_u32 s40, s40, s46")
        e("s_addc_u32 s41, s41, 0")
        e("s_add_u32 m0, m0, 1024")
    e("s_sub_u32 s48, s48, 1")
    e("s_cmp_lg_u32 s48, 0")
    e("s_cbranch_scc1 L_dma")
    e.label("L_pro2")
    e("s_lshr_b32 s6, s5, 3")
    e("s_and_b32 s7, s5, 7")
    e("s_lshl_b32 s8, s6, 3")
    e("s_add_u32 s8, s8, s4")
    e("s_lshl_b32 s8, s8, 3")
    e("s_add_u32 s8, s8, s7")
    e("s_lshl_b32 s9, s8, 17")
    e("s_and_b32 s10, s3, 7")
    e("s_lshl_b32 s11, s10, 14")
    e("s_add_u32 s9, s9, s11")
    e("s_lshl_b32 s11, s3, 1")
    e("s_add_u32 s11, s11, s5")
    e("s_and_b32 s11, s11, 15")
    e("s_lshl_b32 s11, s11, 10")
    e(f"s_mov_b32 s15, {TIMEOUT}")
    e("s_mov_b32 s100, 0")
    e("v_mov_b32 v19, 0")
    if earlybar:
        e("s_cmp_lt_u32 s3, 3")
        e("s_cbranch_scc1 L_bar1")
    e("s_cmp_lg_u32 s3, 3")
    e("s_cbranch_scc1 L_bar0")
    e("v_lshlrev_b32 v1, 2, v0")
    e("ds_write_b32 v1, v19")
    e("s_waitcnt lgkmcnt(0)")
    e.label("L_bar0")
    e("s_barrier")
    e.label("L_bar1")
    e("s_waitcnt lgkmcnt(0)")
    e("s_cmp_lt_u32 s3, 8")
    e("s_cbranch_scc1 L_kside")

    e("v_lshlrev_b32 v1, 4, v0")
    kvloads(20, 1)
    e("v_mov_b32 v3, 1")
    lds_add(F_VI, 3)
    stamp("Vissued")
    e("v_lshrrev_b32 v2, 4, v0")
    e("v_lshlrev_b32 v2, 7, v2")
    e("v_and_b32 v17, 3, v0")
    e("v_lshl_add_u32 v5, v17, 5, v2")
    e("s_lshl_b32 s40, s10, 9")
    e("v_add_u32 v5, s40, v5")
    e("v_bfe_u32 v8, v0, 2, 2")
    e(f"v_mul_u32_u24 v4, {PARTH}, v17")
    e("v_add_u32 v4, v4, v2")
    e("v_lshl_add_u32 v4, v8, 4, v4")
    e(f"s_mul_i32 s41, s10, {PARTW}")
    e("v_add_u32 v4, s41, v4")
    e("v_mov_b32 v9, 0x0c0c0c0c")
    e("v_and_b32 v10, 1, v8")
    e("v_lshlrev_b32 v10, 4, v10")
    e("v_mov_b32 v11, 0x0d0c")
    e("v_lshlrev_b32 v11, v10, v11")
    e("v_xor_b32 v11, v9, v11")
    e("v_mov_b32 v12, 0x0f0e")
    e("v_lshlrev_b32 v12, v10, v12")
    e("v_xor_b32 v12, v9, v12")
    e("v_cmp_gt_u32 vcc, 2, v8")
    e("v_cndmask_b32 v13, v9, v11, vcc")
    e("v_cndmask_b32 v14, v11, v9, vcc")
    e("v_cndmask_b32 v15, v9, v12, vcc")
    e("v_cndmask_b32 v16, v12, v9, vcc")
    e("s_lshl_b32 s42, s10, 2")
    e("v_mov_b32 v6, s42")
    lds_wait("vwait", F_PF, "eq", 0, 6, 7)
    e(f"ds_read_b128 v[24:27], v5 offset:{L_P}")
    e(f"ds_read_b128 v[28:31], v5 offset:{L_P+16}")
    e("s_waitcnt vmcnt(16) lgkmcnt(0)")
    for n in range(16):
        e(f"v_perm_b32 v{32+2*n}, v{24+n//2}, v{24+n//2}, v{13+2*(n%2)}")
        e(f"v_perm_b32 v{33+2*n}, v{24+n//2}, v{24+n//2}, v{14+2*(n%2)}")
    for n in range(16):
        e(f"s_waitcnt vmcnt({15-n})")
        if n == 15: stamp("Vland")
        for h in range(2):
            acc = f"v[{8+4*h}:{11+4*h}]"
            e(f"v_mfma_f32_16x16x16_bf16 {acc}, v[{64+4*n+2*h}:{65+4*n+2*h}], v[{32+2*n}:{33+2*n}], {'0' if n == 0 else acc}")
        if n == 13: e("s_setprio 3")
        if n == tkat: lds_add(F_TK, 3)
        if n == t2at and t2at != tkat: lds_add(F_T2, 3)
    for h in range(2):
        e(f"ds_write_b128 v4, v[{8+4*h}:{11+4*h}] offset:{L_PART+64*h}")
    e("s_mov_b64 exec, 1")
    if stamps:
        e(f"ds_add_rtn_u32 v7, v19, v3 offset:{F_DONE}")
        e("s_waitcnt lgkmcnt(0)")
        e("v_readfirstlane_b32 s46, v7")
        e("s_cmp_lg_u32 s46, 7")
        e("s_cbranch_scc1 L_exit")
        flush(["Vissued", "Vland"])
    else:
        e(f"ds_add_u32 v19, v3 offset:{F_DONE}")
    e.label("L_exit")
    e("s_endpgm")

    e.label("L_early")
    e("s_cmp_eq_u32 s3, 0")
    e("s_cbranch_scc1 L_xld")
    e(f"s_cmp_eq_u32 s14, {NT:#x}")
    e("s_cbranch_scc1 L_pro2")
    ctg(54, 55)
    e("s_and_b32 s55, s43, 1")
    e("s_mul_i32 s46, s42, 458752")
    e("s_lshl_b32 s47, s54, 7")
    e("s_add_u32 s46, s46, s47")
    e("v_mul_u32_u24 v4, 3584, v4")
    e(f"s_mov_b32 m0, {L_W}")
    e("s_waitcnt lgkmcnt(0)")
    e("s_cmp_eq_u32 s55, 0")
    e("s_cselect_b32 s40, s28, s30")
    e("s_cselect_b32 s41, s29, s31")
    e("s_add_u32 s40, s40, s46")
    e("s_addc_u32 s41, s41, 0")
    e("s_movk_i32 s46, 28672")
    e("s_branch L_dma0")
    e.label("L_xld")
    e("v_lshrrev_b32 v1, 4, v0")
    e("v_and_b32 v3, 15, v0")
    e("v_lshlrev_b32 v2, 10, v1")
    e("v_lshl_add_u32 v2, v3, 4, v2")
    for j in range(4):
        e(f"s_add_u32 s47, s42, {j}")
        e("s_and_b32 s47, s47, 3")
        e("s_lshl_b32 s47, s47, 8")
        e(f"v_add_u32 v{6+j}, s47, v2")
    e("s_waitcnt lgkmcnt(0)")
    for j in range(4):
        e(f"global_load_dwordx4 v[{64+4*j}:{67+4*j}], v{6+j}, s[16:17]")
    e("s_branch L_pro2")

    e.label("L_kside")
    e(f"s_load_dword s37, s[38:39], {WS_EP:#x}")
    e("s_cmp_eq_u32 s3, 0")
    e("s_cbranch_scc1 L_ln")
    e("s_cmp_eq_u32 s3, 2")
    e("s_cbranch_scc1 L_tileq")
    e("s_cmp_lg_u32 s3, 1")
    e("s_cbranch_scc1 L_ks2")
    e(f"s_cmp_lg_u32 s14, {NT:#x}")
    e("s_cbranch_scc1 L_tileg")
    e.label("L_ks2")
    e("s_setprio 3")
    e("s_cmp_lt_u32 s3, 4")
    e("s_cbranch_scc1 L_kpart")
    e("s_setprio 2")

    e.label("L_kpart")
    e("v_bfe_u32 v17, v0, 2, 2")
    e("v_lshlrev_b32 v1, 8, v17")
    e("v_lshrrev_b32 v2, 4, v0")
    e("v_lshl_add_u32 v1, v2, 6, v1")
    e("v_and_b32 v3, 3, v0")
    e("v_lshl_add_u32 v1, v3, 4, v1")
    kvloads(18, 1)
    stamp("kissued")
    e("v_lshlrev_b32 v18, 7, v2")
    e("v_lshl_add_u32 v18, v3, 5, v18")
    e("v_lshl_add_u32 v18, v17, 3, v18")
    e("s_lshl_b32 s42, s10, 9")
    e("v_add_u32 v18, s42, v18")
    e("v_lshlrev_b32 v16, 8, v3")
    e("v_lshl_add_u32 v16, v2, 6, v16")
    e("v_lshl_add_u32 v16, v17, 4, v16")
    e("s_lshl_b32 s13, s4, 2")
    e("s_add_u32 s13, s13, s6")
    e("s_waitcnt lgkmcnt(0)")
    make_tag()
    e("s_cmp_lg_u32 s3, 3")
    e("s_cbranch_scc1 L_qw")
    e("v_lshlrev_b32 v20, 4, v0")
    e("v_add_u32 v21, 0x2000, v20")
    e("v_add_u32 v22, 0x4000, v20")
    e("v_add_u32 v23, 0x6000, v20")
    e("s_lshl_b32 s40, s4, 15")
    e("s_lshl_b32 s41, s6, 11")
    e("s_add_u32 s40, s40, s41")
    wsaddr(40, 40, WS_QP)
    xtags(44)
    e(f"s_mov_b32 s48, {mixafter-1}")
    e("v_mov_b32 v10, 1")
    lds_wait("qpub", F_QPUB, "eq", 0, 19, 8, sleep=2)
    if g1: e(f"s_sleep {g1}")
    stamp("gath0")
    gather32("qpoll", [f"global_load_dwordx4 v[{32+4*i}:{35+4*i}], v{20+i//2}, s[40:41] offset:{1024*(i%2)} sc1" for i in range(8)], 44, 0, mix=True)
    count("qn", 53)
    e("v_and_b32 v8, 0x80, v9")
    e("v_cmp_ne_u32 vcc, 0, v8")
    e("v_mov_b32 v8, %d" % (1 if forcex else 0))
    e("s_cbranch_vccz L_samex")
    for r in range(32, 64): e(f"v_and_b32 v{r}, v29, v{r}")
    e("v_mov_b32 v8, 1")
    e.label("L_samex")
    e(f"ds_write_b32 v19, v8 offset:{F_SX}")
    e(f"ds_or_b32 v19, v8 offset:{F_MIX}")
    sum4()
    for i in range(4):
        e(f"v_cvt_pk_bf16_f32 v{4+i}, v{32+2*i}, v{33+2*i}")
    e("v_and_b32 v20, 15, v0")
    e("v_lshlrev_b32 v20, 1, v20")
    e("v_lshl_add_u32 v20, v2, 7, v20")
    for hf in range(2):
        for c in range(4):
            op = "ds_write_b16_d16_hi" if c & 1 else "ds_write_b16"
            e(f"{op} v20, v{4+2*hf+c//2} offset:{L_Q+hf*512+c*32}")
    e("v_mov_b32 v8, 1")
    e(f"ds_write_b32 v19, v8 offset:{F_QRDY}")
    e("s_branch L_qwok")
    e.label("L_qw")
    e(f"ds_read_b64 v[20:21], v19 offset:{F_QRDY}")
    e("s_waitcnt lgkmcnt(0)")
    e("v_readfirstlane_b32 s40, v21")
    e("v_cmp_eq_u32 vcc, 0, v20")
    e("s_cmp_eq_u32 s100, 0")
    e("s_cbranch_scc1 L_qw2")
    e("s_cmp_eq_u32 s40, 0")
    e("s_cbranch_scc1 L_qw2")
    e("s_mov_b32 s100, 0")
    e("s_waitcnt vmcnt(0)")
    e("global_store_dwordx4 v7, v[12:15], s[58:59] sc1")
    e.label("L_qw2")
    poll_tail("L_qw", "L_qwok", 2)
    e(f"ds_read_b128 v[4:7], v16 offset:{L_Q}")
    e("s_waitcnt vmcnt(0) lgkmcnt(0)")
    stamp("qrecv")
    def dreg(n): return 8 if n == 0 else 64 + 4 * (n - 1)
    for n in range(16):
        d = dreg(n)
        e(f"v_mfma_f32_16x16x32_bf16 v[{d}:{d+3}], v[{64+4*n}:{67+4*n}], v[4:7], 0")
    for k in range(3):
        for n in range(16):
            d = dreg(n); z = n // 4; t = 12 + n % 4
            c = [c for c in range(4) if c != z][k]
            s1 = f"v{d+z}" if k == 0 else f"v{t}"
            e(f"v_add_f32_dpp v{t}, v{d+c}, {s1} row_ror:{4*((z-c)%4)} row_mask:0xf bank_mask:{1<<z:#x}")
    round4(12, 20, 21)
    for i in range(4): e(f"v_mul_f32 v{12+i}, {SCALE:#x}, v{12+i}")
    round4(12, 20, 21)
    e("v_max3_f32 v22, v12, v13, v14")
    e("v_max_f32 v22, v22, v15")
    allred("v_max_f32", 22, 24, lanes16=(4, 8))
    e(f"s_mov_b32 s43, {LOG2E:#x}")
    e("v_mul_f32 v24, s43, v22")
    for i in range(4): e(f"v_fma_f32 v{12+i}, v{12+i}, s43, -v24")
    for i in range(4): e(f"v_exp_f32 v{12+i}, v{12+i}")
    e("v_cvt_pk_bf16_f32 v20, v12, v13")
    e("v_cvt_pk_bf16_f32 v21, v14, v15")
    e(f"ds_write_b64 v18, v[20:21] offset:{L_P}")
    e("v_add_f32 v23, v12, v13")
    e("v_add_f32 v25, v14, v15")
    e("v_add_f32 v23, v23, v25")
    allred("v_add_f32", 23, 24, lanes16=(4, 8))
    e("s_lshl_b32 s42, s10, 3")
    e("v_lshl_add_u32 v24, v3, 6, s42")
    e(f"ds_write_b64 v24, v[22:23] offset:{L_ST}")
    e("s_lshl_b32 s42, s10, 2")
    e("v_mov_b32 v26, s42")
    e("v_mov_b32 v27, 1")
    e(f"ds_write_b32 v26, v27 offset:{F_PF}")
    stamp("smax")
    e("s_setprio 3")
    e("s_cmp_ge_u32 s3, 4")
    e("s_cbranch_scc1 L_owave")
    e("s_cmp_eq_u32 s3, 2")
    e("s_cbranch_scc1 L_fwave")
    e("s_cmp_lt_u32 s3, 2")
    e("s_cbranch_scc1 L_rwave")
    e("s_lshl_b32 s54, s13, 9")
    wsaddr(54, 54, WS_STAT)
    e("v_and_b32 v6, 31, v0")
    e("v_lshlrev_b32 v7, 2, v6")
    e("v_lshlrev_b32 v6, 4, v6")
    e("s_not_b32 s27, s26")
    lds_wait("svi", F_VI, "gt", svi, 19, 2, sleep=2)
    e.label("L_spoll")
    e("global_load_dwordx4 v[40:43], v6, s[54:55] sc1")
    e("s_waitcnt vmcnt(0)")
    untag([40, 41])
    e("v_xor_b32 v42, s26, v42")
    e("v_xor_b32 v43, s27, v43")
    e("v_or_b32 v12, v40, v41")
    e("v_and_b32 v12, 0xff, v12")
    e("v_or3_b32 v12, v12, v42, v43")
    e("v_cmp_ne_u32 vcc, 0, v12")
    poll_tail("L_spoll", "L_sok", sleep=8)
    def red_s(op, r):
        for m in ("quad_perm:[1,0,3,2]", "quad_perm:[2,3,0,1]", "row_half_mirror"):
            e(f"{op}_dpp v{r}, v{r}, v{r} {m} row_mask:0xf bank_mask:0xf")
    e("v_mov_b32 v12, v40")
    red_s("v_max_f32", 12)
    e("v_sub_f32 v12, v40, v12")
    e("v_mul_f32 v12, s43, v12")
    e("v_exp_f32 v12, v12")
    e("v_mul_f32 v14, v12, v41")
    red_s("v_add_f32", 14)
    e("v_rcp_f32 v14, v14")
    e("v_mul_f32 v12, v12, v14")
    e(f"ds_write_b32 v7, v12 offset:{L_FAC}")
    lds_add(F_RP, 27, restore=False)
    stamp("Ostat")
    flush(["gath0", "qrecv", "qn", "Ostat"])

    e.label("L_rwave")
    e("v_and_b32 v1, 7, v0")
    e("v_lshlrev_b32 v1, 2, v1")
    e("v_lshrrev_b32 v3, 5, v0")
    e("s_lshl_b32 s46, s3, 1")
    e("v_add_u32 v3, s46, v3")
    e("v_lshlrev_b32 v4, 6, v3")
    e(f"v_mul_u32_u24 v5, {PARTH}, v3")
    e("v_and_b32 v6, 31, v0")
    e("v_lshl_add_u32 v5, v6, 4, v5")
    e("s_lshl_b32 s46, s4, 5")
    e("s_add_u32 s46, s46, s5")
    e(f"s_mul_i32 s46, s46, {OB1S}")
    e("s_lshl_b32 s47, s3, 10")
    e("s_add_u32 s46, s46, s47")
    wsaddr(46, 46, WS_OB1)
    e("s_lshl_b32 s48, s4, 11")
    e("s_lshl_b32 s49, s5, 4")
    e("s_add_u32 s48, s48, s49")
    wsaddr(48, 48, WS_STAT)
    e("v_lshlrev_b32 v7, 4, v0")
    e("v_lshlrev_b32 v6, 9, v3")
    lds_wait("rpf", F_PF, "eq", 0, 1, 2)
    e(f"ds_read_b32 v2, v19 offset:{F_SX}")
    for i in range(4):
        e(f"ds_read_b128 v[{32+4*i}:{35+4*i}], v4 offset:{L_ST+16*i}")
    e("s_waitcnt lgkmcnt(0)")
    e("v_readfirstlane_b32 s36, v2")
    e("v_max3_f32 v8, v32, v34, v36")
    e("v_max3_f32 v8, v8, v38, v40")
    e("v_max3_f32 v8, v8, v42, v44")
    e("v_max_f32 v8, v8, v46")
    for w in range(8): e(f"v_sub_f32 v{32+2*w}, v{32+2*w}, v8")
    for w in range(8): e(f"v_mul_f32 v{32+2*w}, s43, v{32+2*w}")
    for w in range(8): e(f"v_exp_f32 v{32+2*w}, v{32+2*w}")
    e("v_mul_f32 v9, v32, v33")
    for w in range(1, 8): e(f"v_fmac_f32 v9, v{32+2*w}, v{33+2*w}")
    tag([8, 9])
    e("v_mov_b32 v10, s26")
    e("v_not_b32 v11, v10")
    e("s_mov_b32 s52, 1")
    e("s_mov_b32 s53, 1")
    e("s_mov_b64 exec, s[52:53]")
    e("s_cmp_lg_u32 s36, 0")
    store2("rs", "global_store_dwordx4 v6, v[8:11], s[48:49]")
    e("s_mov_b64 exec, -1")
    if pf1 == 2:
        e("s_cbranch_scc1 L_nopf1")
        e("global_store_dwordx4 v7, v[8:11], s[46:47]")
        e.label("L_nopf1")
    elif pf1: e("global_load_dwordx4 v[100:103], v7, s[46:47] sc1")
    lds_wait("rtk", F_TK, "gt", 8, 19, 2, sleep=1)
    e.label("L_rdone")
    e(f"ds_read_b32 v2, v19 offset:{F_DONE}")
    for w in range(8):
        e(f"ds_read_b128 v[{64+4*w}:{67+4*w}], v5 offset:{L_PART+w*PARTW}")
    e("s_waitcnt lgkmcnt(8)")
    e("v_cmp_gt_u32 vcc, 8, v2")
    poll_tail("L_rdone", "L_rdoneok", 0)
    for w in range(8):
        e(f"s_waitcnt lgkmcnt({7-w})")
        if w == 7: stamp("Rgo")
        for hh in range(2):
            x = f"v[{64+4*w+2*hh}:{65+4*w+2*hh}]"
            acc = f"v[{12+2*hh}:{13+2*hh}]"
            if w == 0:
                e(f"v_pk_mul_f32 {acc}, {x}, v[32:33] op_sel_hi:[1,0]")
            else:
                e(f"v_pk_fma_f32 {acc}, {x}, v[{32+2*w}:{33+2*w}], {acc} op_sel_hi:[1,0,1]")
    e("s_cmp_lg_u32 s36, 0")
    tag([12, 13, 14, 15])
    store2("ro", "global_store_dwordx4 v7, v[12:15], s[46:47]")
    lds_add(F_RP, 27, restore=False)
    stamp("Rpub")
    if stamps:
        e("s_cmp_lg_u32 s3, 0")
        e("s_cbranch_scc1 L_exit")
    flush(["start", "xland", "lndone", "Rgo", "Rpub"])

    e.label("L_owave")
    e("s_sub_u32 s11, s3, 4")
    e("s_lshl_b32 s12, s13, 2")
    e("s_add_u32 s12, s12, s11")
    e("s_mul_i32 s52, s11, 6144")
    e(f"s_add_u32 s52, s52, {L_WO}")
    e("v_lshlrev_b32 v11, 5, v2")
    e("v_lshl_add_u32 v11, v3, 3, v11")
    e("v_add_u32 v11, s52, v11")
    e("v_lshl_add_u32 v10, v17, 7, v11")
    e("v_bfe_u32 v34, v0, 2, 1")
    e("v_lshl_add_u32 v11, v34, 11, v11")
    e("v_bfe_u32 v34, v0, 3, 1")
    e("v_lshl_add_u32 v11, v34, 10, v11")
    e("s_lshl_b32 s42, s7, 7")
    e("s_lshl_b32 s46, s12, 15")
    e("s_add_u32 s46, s46, s42")
    e("s_add_u32 s46, s24, s46")
    e("s_addc_u32 s47, s25, 0")
    e("s_add_u32 s44, s32, s42")
    e("s_addc_u32 s45, s33, 0")
    e("v_lshrrev_b32 v4, 3, v0")
    e("v_and_b32 v30, 7, v0")
    e("v_lshlrev_b32 v30, 4, v30")
    e("v_lshl_add_u32 v31, v4, 10, v30")
    ctg(48, 49)
    e("s_lshl_b32 s48, s48, 6")
    e("s_lshl_b32 s49, s11, 2")
    e("s_add_u32 s48, s48, s49")
    e(f"s_cmp_eq_u32 s14, {NT:#x}")
    e("s_cselect_b32 s48, 0, s48")
    e("v_and_b32 v36, 3, v4")
    e("v_lshrrev_b32 v34, 2, v4")
    e("v_lshl_add_u32 v34, v36, 4, v34")
    e("v_add_u32 v34, s48, v34")
    e("v_lshl_add_u32 v34, v34, 10, v30")
    e("v_add_u32 v35, 2048, v34")
    if tlbw:
        e("s_mov_b64 exec, 1")
        e(f"global_load_dword v90, v31, s[46:47]{wf}")
        e(f"global_load_dword v91, v34, s[44:45]{wf}")
        e("s_mov_b64 exec, -1")
    e("v_bfe_u32 v5, v0, 3, 2")
    e("v_lshrrev_b32 v17, 5, v0")
    e("v_lshlrev_b32 v7, 5, v5")
    e("v_lshl_add_u32 v7, v17, 4, v7")
    e("v_lshlrev_b32 v16, 3, v5")
    e("v_lshl_add_u32 v16, v17, 2, v16")
    e(f"v_mul_u32_u24 v16, {OB1S}, v16")
    e("v_add_u32 v16, v16, v30")
    e("v_bfe_u32 v4, v0, 2, 3")
    e("v_lshlrev_b32 v4, 2, v4")
    e("v_lshl_add_u32 v4, v3, 5, v4")
    e("v_and_b32 v6, 15, v0")
    e("s_lshl_b32 s49, s11, 7")
    e("v_lshl_add_u32 v6, v6, 3, s49")
    e("v_lshlrev_b32 v18, 4, v0")
    e(f"v_add_u32 v26, {L_OR}, v18")
    e("s_lshl_b32 s49, s11, 10")
    e("v_add_u32 v27, s49, v26")
    e("v_mov_b32 v1, 1")
    e("v_lshlrev_b32 v12, 7, v0")
    e("v_mov_b32 v13, s26")
    for i in range(8): e(f"v_mov_b32 v{56+i}, 0")
    e("s_mov_b32 m0, s52")
    if worot == "rb":
        e("s_add_u32 s58, s11, s13")
        e("s_and_b32 s58, s58, 3")
    elif worot == "cs":
        e("s_add_u32 s58, s11, s5")
        e("s_and_b32 s58, s58, 3")
    if wotime:
        lds_wait("wovi", F_VI, "gt", 8, 19, 2, sleep=2)
        e.label("L_wot")
        e("s_sleep 1")
        e("s_memrealtime s[56:57]")
        e("s_waitcnt lgkmcnt(0)")
        e(f"s_sub_u32 s56, s56, s{SB}")
        e(f"s_cmp_lt_u32 s56, {wotime}")
        e("s_cbranch_scc1 L_wot")
    else: lds_wait("wotk", F_TK if t2at == tkat else F_T2, "gt", wodone, 19, 2, sleep=2)
    wf2 = wf if wof is None else ((" " + wof) if wof else "")
    if worot:
        for i in range(4):
            e(f"s_xor_b32 s56, s58, {i}")
            e("s_lshl_b32 s57, s56, 10")
            e("s_add_u32 m0, s52, s57")
            e("s_lshl_b32 s56, s56, 13")
            e("s_add_u32 s56, s46, s56")
            e("s_addc_u32 s57, s47, 0")
            e(f"global_load_lds_dwordx4 v31, s[56:57]{wf2}")
        e("s_add_u32 m0, s52, 4096")
    else:
        for i in range(4):
            e(f"global_load_lds_dwordx4 v31, s[46:47]{wf2}")
            e("s_add_u32 m0, m0, 1024")
            if i < 3:
                e(f"s_add_u32 s46, s46, 8192")
                e(f"s_addc_u32 s47, s47, 0")
    e(f"s_cmp_eq_u32 s14, {NT:#x}")
    e("s_cbranch_scc1 L_nowd")
    e(f"global_load_lds_dwordx4 v34, s[44:45]{wf2}")
    e("s_add_u32 m0, m0, 1024")
    e(f"global_load_lds_dwordx4 v35, s[44:45]{wf2}")
    e.label("L_nowd")
    e(f"s_mul_i32 s44, s4, {32*OB1S}")
    e("s_and_b32 s45, s12, 15")
    e("s_lshl_b32 s45, s45, 7")
    e("s_add_u32 s44, s44, s45")
    wsaddr(44, 44, WS_OB1 + 3 * OB1S // 2)
    e("s_lshl_b32 s46, s7, 5")
    e("s_add_u32 s46, s46, s13")
    e(f"s_mul_i32 s46, s46, {OB2S}")
    wsaddr(46, 46, WS_OB2)
    e("s_lshl_b32 s50, s7, 12")
    e("s_add_u32 s50, s50, s13" if hmode == 1 else "s_add_u32 s50, s50, s4")
    wsaddr(50, 50, WS_HF2)
    e("s_mov_b32 s54, -1")
    e("s_mov_b32 s55, 0")
    if hmode == 2:
        e("s_cmp_eq_u32 s6, 0")
        e("s_cselect_b32 s49, 3, 99")
    else:
        e("s_mov_b32 s49, %d" % (3 if hmode else 99))
    lds_wait("orp", F_RP, "gt", 4, 19, 2, sleep=1)
    def oloads(base=40):
        for i in range(4):
            e(f"global_load_dwordx4 v[{base+4*i}:{base+3+4*i}], v16, s[44:45] offset:{i*OB1S-3*OB1S//2} sc1")
    def ocheck(base, pend):
        for i in range(4):
            e(f"s_waitcnt vmcnt({3-i+pend})")
            b = base + 4 * i
            untag(range(b, b + 4))
            for hh in range(2):
                x = f"v[{b+2*hh}:{b+1+2*hh}]"
                acc = f"v[{20+2*hh}:{21+2*hh}]"
                fp = f"v[{32+2*(i//2)}:{33+2*(i//2)}]"
                if i == 0: e(f"v_pk_mul_f32 {acc}, {x}, {fp} op_sel_hi:[1,0]")
                elif i % 2 == 0: e(f"v_pk_fma_f32 {acc}, {x}, {fp}, {acc} op_sel_hi:[1,0,1]")
                else: e(f"v_pk_fma_f32 {acc}, {x}, {fp}, {acc} op_sel:[0,1,0] op_sel_hi:[1,1,1]")
            if i == 0:
                e(f"v_or3_b32 v28, v{b}, v{b+1}, v{b+2}")
                e(f"v_or_b32 v28, v28, v{b+3}")
            else:
                e(f"v_or3_b32 v28, v28, v{b}, v{b+1}")
                e(f"v_or3_b32 v28, v28, v{b+2}, v{b+3}")
        e("v_and_b32 v28, 0xff, v28")
        e("v_cmp_ne_u32 vcc, 0, v28")
        e("s_cbranch_vccz L_ook")
        e("s_mov_b64 exec, vcc")
    oloads()
    stamp("Ogo")
    if stamps: e("s_mov_b32 s53, s15")
    e(f"ds_read_b128 v[32:35], v7 offset:{L_FAC}")
    e(f"ds_read_b64 v[38:39], v6 offset:{L_H}")
    e("s_waitcnt vmcnt(4)")
    for n in range(4):
        e(f"ds_read_b64_tr_b16 v[{64+2*n}:{65+2*n}], v10 offset:{4096+n*512}")
    for n in range(8):
        e(f"ds_read_b64_tr_b16 v[{96+2*n}:{97+2*n}], v11 offset:{n*128}")
    e("s_waitcnt lgkmcnt(0)" if stamps else "s_waitcnt lgkmcnt(8)")
    for n in range(4):
        acc = f"v[{56+4*(n%2)}:{59+4*(n%2)}]"
        if n == 0:
            e(f"s_cmp_eq_u32 s14, {NT:#x}")
            e("s_cbranch_scc1 L_ochk")
        e(f"v_mfma_f32_4x4x4_16b_bf16 {acc}, v[38:39], v[{64+2*n}:{65+2*n}], {acc} cbsz:4 abid:{n}")
    if opipe:
        e.label("L_ochk")
        oloads(72)
        ocheck(40, 4)
        oloads(40)
        ocheck(72, 4)
        e("s_sub_u32 s15, s15, 1")
        e("s_cbranch_scc0 L_ochk")
        e("s_mov_b32 s15, 0")
    else:
        e("s_branch L_ochk")
        e.label("L_opoll")
        if osleep: e(f"s_sleep {osleep}")
        oloads()
        e.label("L_ochk")
        ocheck(40, 0)
        e("s_sub_u32 s15, s15, 1")
        e("s_cbranch_scc0 L_opoll")
        e("s_mov_b32 s15, 0")
    e.label("L_ook")
    e("s_mov_b64 exec, 1")
    e(f"ds_add_rtn_u32 v2, v19, v1 offset:{F_GT}")
    e("s_mov_b64 exec, -1")
    stamp("h1")
    count("h1n", 53)
    e("v_permlane32_swap_b32 v20, v21")
    e("v_permlane32_swap_b32 v22, v23")
    e("v_add_f32 v20, v20, v21")
    e("v_add_f32 v22, v22, v23")
    e("v_cvt_pk_bf16_f32 v20, v20, v22")
    e("ds_bpermute_b32 v24, v4, v20")
    e("ds_bpermute_b32 v25, v4, v20 offset:128")
    e("s_waitcnt lgkmcnt(2)")
    e("v_readfirstlane_b32 s48, v2")
    e("s_cmp_lg_u32 s48, s49")
    e("s_cbranch_scc1 L_nohint2")
    e("s_mov_b64 exec, s[54:55]")
    e("global_store_byte v12, v13, s[50:51] sc1")
    e("s_mov_b64 exec, -1")
    e.label("L_nohint2")
    e("s_waitcnt lgkmcnt(0)")
    for n in range(8):
        acc = f"v[{56+4*(n%2)}:{59+4*(n%2)}]"
        e(f"v_mfma_f32_4x4x4_16b_bf16 {acc}, v[24:25], v[{96+2*n}:{97+2*n}], {acc} cbsz:4 abid:{n}")
    e("v_pk_add_f32 v[56:57], v[56:57], v[60:61]")
    e("v_pk_add_f32 v[58:59], v[58:59], v[62:63]")
    e("ds_write_b128 v27, v[56:59]")
    e("s_mov_b64 exec, 1")
    e(f"ds_add_rtn_u32 v2, v19, v1 offset:{F_OT}")
    e("s_mov_b64 exec, -1")
    for i in range(4):
        e(f"ds_read_b128 v[{112+4*i}:{115+4*i}], v26 offset:{1024*i}")
    e("s_waitcnt lgkmcnt(4)")
    e("v_readfirstlane_b32 s48, v2")
    e("s_cmp_lg_u32 s48, 3")
    e("s_cbranch_scc1 L_exit")
    e("s_waitcnt lgkmcnt(2)")
    e("v_pk_add_f32 v[112:113], v[112:113], v[116:117]")
    e("v_pk_add_f32 v[114:115], v[114:115], v[118:119]")
    e("s_waitcnt lgkmcnt(0)")
    e("v_pk_add_f32 v[120:121], v[120:121], v[124:125]")
    e("v_pk_add_f32 v[122:123], v[122:123], v[126:127]")
    e("v_pk_add_f32 v[112:113], v[112:113], v[120:121]")
    e("v_pk_add_f32 v[114:115], v[114:115], v[122:123]")
    tag([112, 113, 114, 115])
    e("global_store_dwordx4 v18, v[112:115], s[46:47] sc1")
    e(f"ds_write_b32 v19, v1 offset:{F_ODONE}")
    stamp("Opub")
    flush(["kissued", "smax", "Ogo", "h1", "h1n", "Opub"])

    e.label("L_fwave")
    e("s_lshl_b32 s40, s13, 13")
    wsaddr(40, 40, WS_GP + 4096)
    e("v_lshlrev_b32 v20, 4, v0")
    e("s_lshl_b32 s44, s4, 7")
    e("s_lshl_b32 s45, s5, 2")
    e("s_add_u32 s44, s44, s45")
    e("v_and_b32 v3, 1, v0")
    e("v_lshl_add_u32 v4, v3, 1, s44")
    e("v_bfe_u32 v5, v0, 4, 1")
    e("v_lshl_add_u32 v4, v5, 11, v4")
    e("v_lshrrev_b32 v5, 5, v0")
    e("v_lshl_add_u32 v4, v5, 10, v4")
    e("global_load_ushort v6, v4, s[16:17]")
    if tlbo: e("global_load_ushort v90, v4, s[34:35]")
    e(f"s_cmp_eq_u32 s14, {NT:#x}")
    e("s_cbranch_scc1 L_noh")
    gather32("hpoll", [f"global_load_dwordx4 v[{32+4*i}:{35+4*i}], v20, s[40:41] offset:{1024*i-4096} sc1" for i in range(8)], None, 8)
    stamp("Oh")
    sum4()
    round4(32, 8, 9)
    round4(36, 8, 9)
    e("v_pk_mul_f32 v[32:33], v[32:33], v[36:37]")
    e("v_pk_mul_f32 v[34:35], v[34:35], v[38:39]")
    e("v_cvt_pk_bf16_f32 v32, v32, v33")
    e("v_cvt_pk_bf16_f32 v33, v34, v35")
    e("v_and_b32 v21, 15, v0")
    e("v_lshlrev_b32 v21, 5, v21")
    e("v_lshl_add_u32 v21, v2, 3, v21")
    e(f"ds_write_b64 v21, v[32:33] offset:{L_H}")
    e.label("L_noh")
    lds_add(F_RP, 27)
    e("s_waitcnt vmcnt(0)")
    e("v_lshlrev_b32 v6, 16, v6")
    e("v_lshrrev_b32 v8, 1, v0")
    e(f"v_mul_u32_u24 v8, {OB2S}, v8")
    e("v_lshl_add_u32 v8, v3, 4, v8")
    e(f"s_mul_i32 s46, s4, {32*OB2S}")
    e("s_lshl_b32 s47, s5, 5")
    e("s_add_u32 s46, s46, s47")
    wsaddr(46, 46, WS_OB2)
    e("s_mov_b32 s48, 0x00030003")
    e("s_mov_b32 s49, 0x00030003")
    e(f"v_mov_b32 v12, {WS_EP:#x}")
    e("v_mov_b32 v13, s26")
    e("s_lshl_b32 s50, s4, 5")
    e("s_add_u32 s50, s50, s5")
    e("s_lshl_b32 s50, s50, 7")
    wsaddr(50, 50, WS_HF2)
    e(f"s_mul_i32 s66, s{TG}, 0x01010101")
    e("s_mov_b32 s67, s66")
    if fgate == 'rp': lds_wait("frp", F_RP, "gt", 4, 19, 2, sleep=2)
    else: lds_wait("frp", F_GT, "gt", fgate, 19, 2, sleep=1)
    if hmode:
        e.label("L_hw2")
        if hmode == 1:
            e("s_load_dwordx8 s[56:63], s[50:51], 0 glc")
            e("s_waitcnt lgkmcnt(0)")
            for i in range(4): e(f"s_xor_b64 s[{56+2*i}:{57+2*i}], s[{56+2*i}:{57+2*i}], s[66:67]")
            e("s_or_b64 s[56:57], s[56:57], s[58:59]")
            e("s_or_b64 s[60:61], s[60:61], s[62:63]")
            e("s_or_b64 s[56:57], s[56:57], s[60:61]")
        else:
            e("s_load_dwordx2 s[56:57], s[50:51], 0 glc")
            e(f"ds_read_b32 v2, v19 offset:{F_ODONE}")
            e("s_waitcnt lgkmcnt(0)")
            e("v_cmp_eq_u32 vcc, 0, v2")
            e("s_cmp_lg_u64 s[56:57], s[66:67]")
        e("s_cbranch_scc0 L_hw2ok")
        e("s_sub_u32 s15, s15, 1")
        e("s_cbranch_scc0 L_hw2")
        e("s_mov_b32 s15, 0")
        e.label("L_hw2ok")
        if hmode == 2: e("s_cbranch_vccz L_fodok")
    lds_wait("fod", F_ODONE, "eq", 0, 19, 2, sleep=0)
    if stamps: e("s_mov_b32 s53, s15")
    e.label("L_fpoll")
    e(f"global_load_dwordx4 v[20:23], v8, s[46:47] {fld}")
    e("s_waitcnt vmcnt(0)")
    stamp("h2")
    untag(range(20, 24))
    e("v_or3_b32 v28, v20, v21, v22")
    e("v_or_b32 v28, v28, v23")
    e("v_and_b32 v28, 0xff, v28")
    e("v_cmp_ne_u32 vcc, 0, v28")
    e("s_cbranch_vccz L_fok")
    e("s_mov_b64 exec, vcc")
    if fsleep: e(f"s_sleep {fsleep}")
    e("s_sub_u32 s15, s15, 1")
    e("s_cbranch_scc0 L_fpoll")
    e("s_mov_b32 s15, 0")
    e.label("L_fok")
    e("s_mov_b64 exec, -1")
    e("v_permlane32_swap_b32 v20, v21")
    e("v_permlane32_swap_b32 v22, v23")
    e("v_add_f32 v20, v20, v21")
    e("v_add_f32 v22, v22, v23")
    e("v_permlane16_swap_b32 v20, v22")
    e("v_add_f32 v20, v20, v22")
    count("h2n", 53)
    for sh in (2, 4, 8):
        e(f"v_add_f32_dpp v20, v20, v20 row_ror:{sh} row_mask:0xf bank_mask:0xf")
    e("v_add_f32 v20, v20, v6")
    e("v_cvt_pk_bf16_f32 v20, v20, v20")
    e("s_mov_b64 exec, s[48:49]")
    e("global_store_short v4, v20, s[34:35]")
    e("s_cmp_lg_u32 s2, 0")
    e("s_cbranch_scc1 L_fend")
    e("s_mov_b64 exec, 1")
    e("global_store_dword v12, v13, s[38:39]")
    e.label("L_fend")
    if padto:
        e.label("L_pad")
        e("s_memrealtime s[74:75]")
        e("s_waitcnt lgkmcnt(0)")
        e("s_sub_u32 s74, s74, s72")
        e(f"s_cmp_lt_u32 s74, {padto*100}")
        e("s_cbranch_scc1 L_pad")
    if stamps:
        e("s_waitcnt vmcnt(0)")
        stamp("end")
    flush(["wland", "qpub", "Oh", "h2", "h2n", "end"])

    e.label("L_ln")
    e("s_waitcnt vmcnt(0)")
    stamp("xland")
    for i in range(16):
        e(f"v_lshlrev_b32 v{80+2*i}, 16, v{64+i}")
        e(f"v_and_b32 v{81+2*i}, 0xffff0000, v{64+i}")
    e("v_pk_add_f32 v[20:21], v[80:81], v[82:83]")
    e("v_pk_add_f32 v[22:23], v[84:85], v[86:87]")
    for i in range(4, 16):
        acc = 20 + 2 * (i % 2)
        e(f"v_pk_add_f32 v[{acc}:{acc+1}], v[{acc}:{acc+1}], v[{80+2*i}:{81+2*i}]")
    e("v_pk_add_f32 v[20:21], v[20:21], v[22:23]")
    e("v_add_f32 v20, v20, v21")
    for sh in (8, 4, 2, 1):
        e(f"v_add_f32_dpp v20, v20, v20 row_ror:{sh} row_mask:0xf bank_mask:0xf")
    e("v_mul_f32 v20, 0x3b000000, v20")
    e("v_cvt_pk_bf16_f32 v22, v20, v20")
    e("v_lshlrev_b32 v22, 16, v22")
    e("v_sub_f32 v24, v20, v22")
    for i in range(16):
        e(f"v_pk_add_f32 v[{80+2*i}:{81+2*i}], v[{80+2*i}:{81+2*i}], v[22:23] op_sel_hi:[1,0] neg_lo:[0,1] neg_hi:[0,1]")
    e("v_pk_mul_f32 v[26:27], v[80:81], v[80:81]")
    e("v_pk_mul_f32 v[28:29], v[82:83], v[82:83]")
    for i in range(2, 16):
        acc = 26 + 2 * (i % 2)
        e(f"v_pk_fma_f32 v[{acc}:{acc+1}], v[{80+2*i}:{81+2*i}], v[{80+2*i}:{81+2*i}], v[{acc}:{acc+1}]")
    e("v_pk_add_f32 v[26:27], v[26:27], v[28:29]")
    e("v_add_f32 v26, v26, v27")
    for sh in (8, 4, 2, 1):
        e(f"v_add_f32_dpp v26, v26, v26 row_ror:{sh} row_mask:0xf bank_mask:0xf")
    e("v_mul_f32 v26, 0x3b000000, v26")
    e("v_fma_f32 v26, -v24, v24, v26")
    e("v_max_f32 v26, 0, v26")
    def r1(r):
        e(f"v_cvt_pk_bf16_f32 v{r}, v{r}, v{r}")
        e(f"v_lshlrev_b32 v{r}, 16, v{r}")
    r1(26)
    e("v_add_f32 v26, 0x3727c5ac, v26")
    r1(26)
    e("v_sqrt_f32 v26, v26")
    r1(26)
    e("v_rcp_f32 v26, v26")
    round4(80, 64, 65)
    round4(84, 66, 67)
    for i in range(4):
        e(f"v_pk_mul_f32 v[{80+2*i}:{81+2*i}], v[{80+2*i}:{81+2*i}], v[26:27] op_sel_hi:[1,0]")
    for i in range(4):
        e(f"v_cvt_pk_bf16_f32 v{20+i}, v{80+2*i}, v{81+2*i}")
    e("v_lshlrev_b32 v2, 4, v0")
    e(f"ds_write_b128 v2, v[20:23] offset:{L_XN}")
    e("v_mov_b32 v1, 1")
    e(f"ds_write_b32 v19, v1 offset:{F_XN}")
    stamp("lndone")
    e("s_branch L_kpart")

    e.label("L_tileg")
    e("v_lshlrev_b32 v7, 4, v0")
    e("v_lshrrev_b32 v1, 4, v0")
    e("s_lshl_b32 s58, s4, 2")
    e("s_add_u32 s58, s58, s6")
    e("s_lshl_b32 s58, s58, 3")
    e("s_lshl_b32 s57, s42, 1")
    e("s_add_u32 s58, s58, s57")
    e("s_add_u32 s58, s58, s55")
    e("s_lshl_b32 s58, s58, 10")
    e(f"s_add_u32 s58, s58, {WS_GP:#x}")
    e(f"s_movk_i32 s45, {L_W}")
    e(f"v_mov_b32 v10, {F_JUNK}")
    e("s_branch L_tile")
    e.label("L_tileq")
    e("v_and_b32 v3, 15, v0")
    e("v_lshrrev_b32 v1, 4, v0")
    e("v_lshlrev_b32 v7, 11, v1")
    e("v_lshl_add_u32 v7, v3, 4, v7")
    e("s_lshl_b32 s58, s4, 15")
    e("s_lshl_b32 s53, s42, 13")
    e("s_add_u32 s58, s58, s53")
    e("s_lshl_b32 s53, s43, 8")
    e("s_add_u32 s58, s58, s53")
    e(f"s_mov_b32 s45, {L_W+16384}")
    e(f"v_mov_b32 v10, {F_QPUB}")
    e.label("L_tile")
    e("v_lshrrev_b32 v4, 2, v0")
    e("v_lshlrev_b32 v4, 7, v4")
    e("v_and_b32 v5, 3, v0")
    e("v_lshl_add_u32 v4, v5, 3, v4")
    e("v_add_u32 v4, s45, v4")
    e("v_bfe_u32 v8, v0, 2, 2")
    e("v_lshlrev_b32 v6, 8, v8")
    e("v_lshl_add_u32 v6, v1, 3, v6")
    e(f"v_add_u32 v6, {L_XN}, v6")
    wsaddr(58, 58, 0)
    e("v_mov_b32 v11, 1")
    e("s_waitcnt lgkmcnt(0)")
    make_tag()
    xtags(60, only_wave=2)
    e("s_waitcnt vmcnt(0)")
    stamp("wland")
    for c in range(4):
        for m in range(4):
            b = 64 + 16 * c + 4 * m
            e(f"ds_read_b64_tr_b16 v[{b}:{b+1}], v4 offset:{m*4096+c*32}")
            e(f"ds_read_b64_tr_b16 v[{b+2}:{b+3}], v4 offset:{m*4096+2048+c*32}")
    lds_wait("xnw", F_XN, "eq", 0, 19, 9, sleep=1)
    for m in range(4):
        e(f"ds_read2_b64 v[{32+4*m}:{35+4*m}], v6 offset0:{8*m} offset1:{8*m+4}")
    for m in range(4):
        e(f"s_waitcnt lgkmcnt({3-m})")
        for c in range(4):
            b = 64 + 16 * c + 4 * m
            acc = f"v[{48+4*c}:{51+4*c}]"
            e(f"v_mfma_f32_16x16x32_bf16 {acc}, v[{32+4*m}:{35+4*m}], v[{b}:{b+3}], {'0' if m == 0 else acc}")
    for c in range(4):
        e(f"v_add_u32 v{12+c}, 0x80, v{48+4*c}")
    tag([12, 13, 14, 15], 60)
    e("global_store_dwordx4 v7, v[12:15], s[58:59]" + (" " + lst if lst else ""))
    e("ds_write_b32 v10, v11")
    e("s_mov_b32 s100, 1")
    stamp("qpub")
    e("s_branch L_kpart")
    e.label("L_codeend")

    txt = wrap(e.text(), 256, 1024, LDS_BYTES, 128, sgpr=102)
    build(txt, name)
    if out_path:
        open(out_path, "w").write(txt)
    return txt

DOC = """; ---------------------------------------------------------------------------------------------
;
; ---------------------------------------------------------------------------------------------
"""
if __name__ == "__main__":
    txt = gen("k37")
    gen("k37_st", stamps=True)
    gen("k37x", forcex=True)
    hdr = open('parallel_sum__gqa_block_cached__glu_gated_bilinear__decode.s.ref').read().split("; Override launch geometry")[0]
    open('parallel_sum__gqa_block_cached__glu_gated_bilinear__decode.s','w').write(hdr + DOC + txt)
```

```python
import sys
from asmlib import *
from emit import Emitter

WS_QP, WS_EP, WS_STAT, WS_GP, WS_OB1, WS_OB2, WS_HF2 = 0, 0x40000, 0x44000, 0x48000, 0x90000, 0x120000, 0x190000
OB1S, OB2S = 2304, 1280
F_QPUB, F_QRDY, F_ODONE, F_DONE, F_JUNK, F_OT, F_XN, F_RP, F_PF, F_VI, F_TK, F_SX, F_GT, F_T2, L_FAC = 0, 88, 8, 12, 16, 20, 24, 28, 32, 64, 72, 76, 80, 84, 128
F_MIX = 92
L_ST, L_Q, L_P, L_XN, L_H, L_PART, L_W, L_WO = 0x100, 0x200, 0x600, 0x1800, 0x1c00, 0x2000, 0x6400, 0xE400
PARTW, PARTH = 2176, 544
L_OR = L_WO + 4 * 6144
LDS_BYTES = L_OR + 4096
NSTAMP = 24
SB = 72
LOG2E = 0x3FB8AA3B
SCALE = 0x3DB504F3
TIMEOUT = 1 << 20
STN = ["start", "xland", "lndone", "wland", "qpub", "kissued", "gath0", "qrecv", "smax", "Oh", "Ostat", "Ogo", "Vissued", "Vland",
       "Rgo", "Rpub", "h1", "Opub", "h2", "end", "h1r1", "h1n", "h2n", "qn"]

def gen(name, stamps=False, kvflags="nt", wflags="nt", out_path=None, g1=0, osleep=0, prefsplit=True,
        pf1=0, svi=3, wodone=8, tkat=14, forcex=False, d2=0, hmode=2, fld='sc0 sc1', fsleep=0, t2at=8, padto=0, fgate=4, opipe=False, wotime=0, worot=None, wof=None, tlbw=False, tlbo=False, mixafter=3, earlybar=False, wrot=False, lst='', kfl=None, vfl=None, light='hi'):
    e = Emitter()
    NT = {'odd': 0xc1, 'hi': 0xc4}[light]
    kvf = (" " + kvflags) if kvflags else ""
    wf = (" " + wflags) if wflags else ""
    order = {"start":0, "xland":1, "lndone":2, "wland":3, "qpub":4, "kissued":5, "gath0":1, "qrecv":6, "smax":7, "Oh":1, "Ostat":2,
             "Ogo":3, "Vissued":1, "Vland":2, "Rgo":8, "Rpub":9, "h1":8, "Opub":9, "h2":8, "end":9, "h1r1":10, "h1n":11, "h2n":11, "qn":11}
    def sreg(nm): return SB + 2 * order[nm]
    def stamp(nm):
        if stamps: e(f"s_memrealtime s[{sreg(nm)}:{sreg(nm)+1}]")
    def count(nm, s_from):
        if stamps:
            e("s_waitcnt lgkmcnt(0)")
            e(f"s_sub_u32 s{s_from}, s{s_from}, s15")
            e(f"s_mul_i32 s{s_from}, s{s_from}, 100")
            e(f"s_add_u32 s{sreg(nm)}, s{SB}, s{s_from}")
            e(f"s_addc_u32 s{sreg(nm)+1}, s{SB+1}, 0")
    def flush(nms):
        if stamps and nms:
            e("s_mov_b64 exec, -1")
            e("s_waitcnt vmcnt(0) lgkmcnt(0)")
            e(f"s_mul_i32 s40, s2, {NSTAMP*8}")
            e("s_add_u32 s40, s40, 0x8000000")
            e("s_add_u32 s40, s38, s40")
            e("s_addc_u32 s41, s39, 0")
            e("v_mov_b32 v1, 0")
            for nm in nms:
                e(f"v_mov_b32 v2, s{sreg(nm)}")
                e(f"v_mov_b32 v3, s{sreg(nm)+1}")
                e(f"global_store_dwordx2 v1, v[2:3], s[40:41] offset:{8*STN.index(nm)}")
                e("s_nop 1")
        e("s_endpgm")

    def allred(op, r, t, lanes16=(1, 2, 4, 8)):
        for sh in lanes16:
            e(f"{op}_dpp v{r}, v{r}, v{r} row_ror:{sh} row_mask:0xf bank_mask:0xf")
        for sw in ("v_permlane16_swap_b32", "v_permlane32_swap_b32"):
            e(f"v_mov_b32 v{t}, v{r}")
            e(f"{sw} v{r}, v{t}")
            e(f"{op} v{r}, v{r}, v{t}")

    def poll_tail(lbl_loop, lbl_done, sleep=2):
        e(f"s_cbranch_vccz {lbl_done}")
        if sleep: e(f"s_sleep {sleep}")
        e("s_sub_u32 s15, s15, 1")
        e(f"s_cbranch_scc0 {lbl_loop}")
        e("s_mov_b32 s15, 0")
        e.label(lbl_done)

    def lds_wait(tag, off, cmp, val, vaddr, vt, sleep=2):
        e.label(f"L_{tag}")
        e(f"ds_read_b32 v{vt}, v{vaddr} offset:{off}")
        e("s_waitcnt lgkmcnt(0)")
        e(f"v_cmp_{cmp}_u32 vcc, {val}, v{vt}")
        poll_tail(f"L_{tag}", f"L_{tag}ok", sleep)

    def lds_add(off, vval, vzero=19, restore=True):
        e("s_mov_b64 exec, 1")
        e(f"ds_add_u32 v{vzero}, v{vval} offset:{off}")
        if restore: e("s_mov_b64 exec, -1")

    def wsaddr(sd, soff, const):
        if const: e(f"s_add_u32 s{sd}, s{soff}, {const:#x}")
        elif sd != soff: e(f"s_mov_b32 s{sd}, s{soff}")
        e(f"s_add_u32 s{sd}, s38, s{sd}")
        e(f"s_addc_u32 s{sd+1}, s39, 0")

    def kvloads(sb, va):
        o = kfl if sb == 18 else vfl
        kvf = ((" " + kvflags) if kvflags else "") if o is None else ((" " + o) if o else "")
        e(f"s_add_u32 s68, s{sb}, s9")
        e(f"s_addc_u32 s69, s{sb+1}, 0")
        e("s_movk_i32 s70, 0x4000")
        e("s_mov_b32 s71, 0x00020000")
        for n in range(16):
            e(f"s_xor_b32 s8, s11, {n<<10}")
            e(f"buffer_load_dwordx4 v[{64+4*n}:{67+4*n}], v{va}, s[68:71], s8 offen{kvf}")

    TG = 96
    def make_tag():
        e("s_add_u32 s26, s37, 1")
        for i, c in enumerate((0, 0x35, 0x5a, 0x6f)):
            if c: e(f"s_add_u32 s{TG+i}, s26, {c:#x}")
            e(f"s_and_b32 s{TG+i}, s{TG+i if c else 26}, 0xff")
        e("v_mov_b32 v29, 0xffffff00")

    def xtags(base, only_wave=None):
        e("s_getreg_b32 s36, hwreg(HW_REG_XCC_ID, 0, 4)")
        if only_wave is not None:
            e(f"s_cmp_eq_u32 s3, {only_wave}")
            e("s_cselect_b32 s36, s36, 0")
        for i in range(4):
            e(f"s_lshl_b32 s{base+i}, s36, {7-i}")
            e(f"s_and_b32 s{base+i}, s{base+i}, 0x80")
            e(f"s_xor_b32 s{base+i}, s{base+i}, s{TG+i}")

    def tag(regs, base=None):
        for r in regs: e(f"v_and_or_b32 v{r}, v{r}, v29, s{(TG if base is None else base) + r % 4}")

    def untag(regs, base=None):
        for r in regs: e(f"v_xor_b32 v{r}, s{(TG if base is None else base) + r % 4}, v{r}")

    def or_all(regs, t, mask=0xff):
        e(f"v_or3_b32 v{t}, v{regs[0]}, v{regs[1]}, v{regs[2]}")
        rest = regs[3:]
        while len(rest) >= 2:
            e(f"v_or3_b32 v{t}, v{t}, v{rest[0]}, v{rest[1]}"); rest = rest[2:]
        if rest: e(f"v_or_b32 v{t}, v{t}, v{rest[0]}")
        if mask is not None: e(f"v_and_b32 v{t}, {mask:#x}, v{t}")

    def gather32(tagname, loads, xt, sleep, mix=False):
        if stamps: e("s_mov_b32 s53, s15")
        e.label(f"L_{tagname}")
        for l in loads: e(l)
        e("s_waitcnt vmcnt(0)")
        untag(range(32, 64), xt)
        or_all(list(range(32, 64)), 9, None)
        e(f"v_and_b32 v8, {0xff if xt is None else 0x7f:#x}, v9")
        e("v_cmp_ne_u32 vcc, 0, v8")
        e(f"s_cbranch_vccz L_{tagname}ok")
        e("s_mov_b64 exec, vcc")
        if mix:
            e("s_sub_u32 s48, s48, 1")
            e(f"s_cbranch_scc0 L_{tagname}m")
            e(f"ds_write_b32 v19, v10 offset:{F_MIX}")
            e("s_sleep 8")
            e.label(f"L_{tagname}m")
        if sleep: e(f"s_sleep {sleep}")
        e("s_sub_u32 s15, s15, 1")
        e(f"s_cbranch_scc0 L_{tagname}")
        e("s_mov_b32 s15, 0")
        e.label(f"L_{tagname}ok")
        e("s_mov_b64 exec, -1")

    def sum4():
        for i in range(4):
            e(f"v_pk_add_f32 v[{32+2*i}:{33+2*i}], v[{32+2*i}:{33+2*i}], v[{40+2*i}:{41+2*i}]")
            e(f"v_pk_add_f32 v[{48+2*i}:{49+2*i}], v[{48+2*i}:{49+2*i}], v[{56+2*i}:{57+2*i}]")
        for i in range(4):
            e(f"v_pk_add_f32 v[{32+2*i}:{33+2*i}], v[{32+2*i}:{33+2*i}], v[{48+2*i}:{49+2*i}]")

    def round4(base, c0, c1):
        e(f"v_cvt_pk_bf16_f32 v{c0}, v{base}, v{base+1}")
        e(f"v_cvt_pk_bf16_f32 v{c1}, v{base+2}, v{base+3}")
        e(f"v_lshlrev_b32 v{base}, 16, v{c0}")
        e(f"v_and_b32 v{base+1}, 0xffff0000, v{c0}")
        e(f"v_lshlrev_b32 v{base+2}, 16, v{c1}")
        e(f"v_and_b32 v{base+3}, 0xffff0000, v{c1}")

    def ctg(d, t):
        if light == 'odd':
            e(f"s_lshr_b32 s{d}, s4, 1")
            e(f"s_mul_i32 s{d}, s{d}, 7")
            e(f"s_and_b32 s{t}, s4, 1")
            e(f"s_lshl_b32 s{t}, s{t}, 2")
            e(f"s_add_u32 s{d}, s{d}, s{t}")
        else:
            e(f"s_mul_i32 s{d}, s4, 3")
            e(f"s_min_u32 s{t}, s4, 4")
            e(f"s_add_u32 s{d}, s{d}, s{t}")
        e(f"s_lshr_b32 s{t}, s5, 3")
        e(f"s_add_u32 s{d}, s{d}, s{t}")

    def store2(lbl, txt):
        e(f"s_cbranch_scc1 L_{lbl}a")
        e(txt + (" " + lst if lst else ""))
        e(f"s_branch L_{lbl}b")
        e.label(f"L_{lbl}a")
        e(txt + " sc1")
        e.label(f"L_{lbl}b")

    e("s_load_dwordx16 s[16:31], s[0:1], 0")
    e("s_load_dwordx8 s[32:39], s[0:1], 64")
    e("s_cmp_ge_u32 s2, 256")
    e("s_cbranch_scc1 L_exit")
    e("v_lshrrev_b32 v1, 6, v0")
    e("s_lshr_b32 s5, s2, 3"); e.note("r")
    e("v_readfirstlane_b32 s3, v1")
    e("s_getpc_b64 s[40:41]")
    e.label("L_pc")
    if prefsplit:
        e("s_xor_b32 s4, s3, s5")
        e("s_and_b32 s4, s4, 3")
        e("s_cbranch_scc1 L_nopf")
    e("v_lshlrev_b32 v1, 4, v0")
    e("v_min_u32 v1, L_codeend-L_pc-4, v1")
    e("global_load_dword v63, v1, s[40:41]"); e.note("pull the code into L2")
    e.label("L_nopf")
    stamp("start")
    if padto: e("s_memrealtime s[72:73]")
    e("v_and_b32 v0, 63, v0")
    e("s_and_b32 s4, s2, 7"); e.note("hkv")
    e("s_and_b32 s42, s5, 3"); e.note("ks")
    e("s_lshr_b32 s43, s5, 2"); e.note("r>>2")
    e("v_lshrrev_b32 v4, 3, v0")
    e("v_and_b32 v5, 7, v0")
    e(f"s_and_b32 s14, s2, {NT:#x}"); e.note("hkv >= 4 and r >= 24: no FFN tile")
    e("s_cmp_gt_u32 s3, 2")
    e("s_cbranch_scc1 L_pro2")
    e("s_setprio 3")
    if earlybar: e("s_barrier")
    e("s_cmp_lt_u32 s3, 2")
    e("s_cbranch_scc1 L_early"); e.note("---- wv 2: wq tile")
    e("s_lshl_b32 s46, s42, 20")
    e("s_lshl_b32 s47, s4, 10")
    e("s_add_u32 s46, s46, s47")
    e("s_lshl_b32 s47, s43, 7")
    e("s_add_u32 s46, s46, s47")
    e("v_lshlrev_b32 v4, 13, v4")
    e(f"s_mov_b32 m0, {L_W+16384}")
    e("s_waitcnt lgkmcnt(0)")
    e("s_add_u32 s40, s22, s46")
    e("s_addc_u32 s41, s23, 0")
    e("s_mov_b32 s46, 0x10000")
    e.label("L_dma0")
    e("v_lshl_add_u32 v4, v5, 4, v4")
    e("s_mov_b32 s48, 16")
    if wrot:
        e("s_mov_b32 s49, m0")
        e("s_lshl_b32 s50, s5, 2")
        e("s_add_u32 s50, s50, s43")
        e("s_add_u32 s50, s50, s4")
        e.label("L_dma")
        e("s_add_u32 s51, s48, s50")
        e("s_and_b32 s51, s51, 15")
        e("s_lshl_b32 s52, s51, 10")
        e("s_add_u32 m0, s49, s52")
        e("s_mul_i32 s51, s51, s46")
        e("s_add_u32 s52, s40, s51")
        e("s_addc_u32 s53, s41, 0")
        e(f"global_load_lds_dwordx4 v4, s[52:53]{wf}")
    else:
        e.label("L_dma")
        e(f"global_load_lds_dwordx4 v4, s[40:41]{wf}")
        e("s_add_u32 s40, s40, s46")
        e("s_addc_u32 s41, s41, 0")
        e("s_add_u32 m0, m0, 1024")
    e("s_sub_u32 s48, s48, 1")
    e("s_cmp_lg_u32 s48, 0")
    e("s_cbranch_scc1 L_dma")
    e.label("L_pro2")
    e("s_lshr_b32 s6, s5, 3"); e.note("b")
    e("s_and_b32 s7, s5, 7"); e.note("s")
    e("s_lshl_b32 s8, s6, 3")
    e("s_add_u32 s8, s8, s4")
    e("s_lshl_b32 s8, s8, 3")
    e("s_add_u32 s8, s8, s7")
    e("s_lshl_b32 s9, s8, 17")
    e("s_and_b32 s10, s3, 7"); e.note("w")
    e("s_lshl_b32 s11, s10, 14")
    e("s_add_u32 s9, s9, s11")
    e("s_lshl_b32 s11, s3, 1")
    e("s_add_u32 s11, s11, s5")
    e("s_and_b32 s11, s11, 15")
    e("s_lshl_b32 s11, s11, 10"); e.note("rho << 10")
    e(f"s_mov_b32 s15, {TIMEOUT}")
    e("s_mov_b32 s100, 0")
    e("v_mov_b32 v19, 0")
    if earlybar:
        e("s_cmp_lt_u32 s3, 3")
        e("s_cbranch_scc1 L_bar1")
    e("s_cmp_lg_u32 s3, 3")
    e("s_cbranch_scc1 L_bar0")
    e("v_lshlrev_b32 v1, 2, v0")
    e("ds_write_b32 v1, v19")
    e("s_waitcnt lgkmcnt(0)")
    e.label("L_bar0")
    e("s_barrier")
    e.label("L_bar1")
    e("s_waitcnt lgkmcnt(0)")
    e("s_cmp_lt_u32 s3, 8")
    e("s_cbranch_scc1 L_kside"); e.note("================= V wave =================")
    e("v_lshlrev_b32 v1, 4, v0")
    kvloads(20, 1)
    e("v_mov_b32 v3, 1")
    lds_add(F_VI, 3)
    stamp("Vissued")
    e("v_lshrrev_b32 v2, 4, v0")
    e("v_lshlrev_b32 v2, 7, v2")
    e("v_and_b32 v17, 3, v0")
    e("v_lshl_add_u32 v5, v17, 5, v2")
    e("s_lshl_b32 s40, s10, 9")
    e("v_add_u32 v5, s40, v5"); e.note("P read address")
    e("v_bfe_u32 v8, v0, 2, 2"); e.note("c")
    e(f"v_mul_u32_u24 v4, {PARTH}, v17")
    e("v_add_u32 v4, v4, v2")
    e("v_lshl_add_u32 v4, v8, 4, v4")
    e(f"s_mul_i32 s41, s10, {PARTW}")
    e("v_add_u32 v4, s41, v4"); e.note("partial write address")
    e("v_mov_b32 v9, 0x0c0c0c0c"); e.note("byte selectors: one bf16 into slot c, zero elsewhere")
    e("v_and_b32 v10, 1, v8")
    e("v_lshlrev_b32 v10, 4, v10")
    e("v_mov_b32 v11, 0x0d0c")
    e("v_lshlrev_b32 v11, v10, v11")
    e("v_xor_b32 v11, v9, v11")
    e("v_mov_b32 v12, 0x0f0e")
    e("v_lshlrev_b32 v12, v10, v12")
    e("v_xor_b32 v12, v9, v12")
    e("v_cmp_gt_u32 vcc, 2, v8")
    e("v_cndmask_b32 v13, v9, v11, vcc")
    e("v_cndmask_b32 v14, v11, v9, vcc")
    e("v_cndmask_b32 v15, v9, v12, vcc")
    e("v_cndmask_b32 v16, v12, v9, vcc")
    e("s_lshl_b32 s42, s10, 2")
    e("v_mov_b32 v6, s42")
    lds_wait("vwait", F_PF, "eq", 0, 6, 7)
    e(f"ds_read_b128 v[24:27], v5 offset:{L_P}")
    e(f"ds_read_b128 v[28:31], v5 offset:{L_P+16}")
    e("s_waitcnt vmcnt(16) lgkmcnt(0)")
    for n in range(16):
        e(f"v_perm_b32 v{32+2*n}, v{24+n//2}, v{24+n//2}, v{13+2*(n%2)}")
        e(f"v_perm_b32 v{33+2*n}, v{24+n//2}, v{24+n//2}, v{14+2*(n%2)}")
    for n in range(16):
        e(f"s_waitcnt vmcnt({15-n})")
        if n == 15: stamp("Vland")
        for h in range(2):
            acc = f"v[{8+4*h}:{11+4*h}]"
            e(f"v_mfma_f32_16x16x16_bf16 {acc}, v[{64+4*n+2*h}:{65+4*n+2*h}], v[{32+2*n}:{33+2*n}], {'0' if n == 0 else acc}")
        if n == 13: e("s_setprio 3")
        if n == tkat: lds_add(F_TK, 3)
        if n == t2at and t2at != tkat: lds_add(F_T2, 3)
    for h in range(2):
        e(f"ds_write_b128 v4, v[{8+4*h}:{11+4*h}] offset:{L_PART+64*h}")
    e("s_mov_b64 exec, 1")
    if stamps:
        e(f"ds_add_rtn_u32 v7, v19, v3 offset:{F_DONE}")
        e("s_waitcnt lgkmcnt(0)")
        e("v_readfirstlane_b32 s46, v7")
        e("s_cmp_lg_u32 s46, 7")
        e("s_cbranch_scc1 L_exit")
        flush(["Vissued", "Vland"])
    else:
        e(f"ds_add_u32 v19, v3 offset:{F_DONE}")
    e.label("L_exit")
    e("s_endpgm"); e.note("================= wv 0 (x loads) / wv 1 (gate/up tile) start =================")
    e.label("L_early")
    e("s_cmp_eq_u32 s3, 0")
    e("s_cbranch_scc1 L_xld")
    e(f"s_cmp_eq_u32 s14, {NT:#x}")
    e("s_cbranch_scc1 L_pro2")
    ctg(54, 55)
    e("s_and_b32 s55, s43, 1"); e.note("mat")
    e("s_mul_i32 s46, s42, 458752")
    e("s_lshl_b32 s47, s54, 7")
    e("s_add_u32 s46, s46, s47")
    e("v_mul_u32_u24 v4, 3584, v4")
    e(f"s_mov_b32 m0, {L_W}")
    e("s_waitcnt lgkmcnt(0)")
    e("s_cmp_eq_u32 s55, 0")
    e("s_cselect_b32 s40, s28, s30")
    e("s_cselect_b32 s41, s29, s31")
    e("s_add_u32 s40, s40, s46")
    e("s_addc_u32 s41, s41, 0")
    e("s_movk_i32 s46, 28672")
    e("s_branch L_dma0")
    e.label("L_xld")
    e("v_lshrrev_b32 v1, 4, v0")
    e("v_and_b32 v3, 15, v0")
    e("v_lshlrev_b32 v2, 10, v1")
    e("v_lshl_add_u32 v2, v3, 4, v2")
    for j in range(4):
        e(f"s_add_u32 s47, s42, {j}")
        e("s_and_b32 s47, s47, 3")
        e("s_lshl_b32 s47, s47, 8")
        e(f"v_add_u32 v{6+j}, s47, v2")
    e("s_waitcnt lgkmcnt(0)")
    for j in range(4):
        e(f"global_load_dwordx4 v[{64+4*j}:{67+4*j}], v{6+j}, s[16:17]")
    e("s_branch L_pro2"); e.note("================= K side after barrier 0 =================")
    e.label("L_kside")
    e(f"s_load_dword s37, s[38:39], {WS_EP:#x}")
    e("s_cmp_eq_u32 s3, 0")
    e("s_cbranch_scc1 L_ln")
    e("s_cmp_eq_u32 s3, 2")
    e("s_cbranch_scc1 L_tileq")
    e("s_cmp_lg_u32 s3, 1")
    e("s_cbranch_scc1 L_ks2")
    e(f"s_cmp_lg_u32 s14, {NT:#x}")
    e("s_cbranch_scc1 L_tileg")
    e.label("L_ks2")
    e("s_setprio 3")
    e("s_cmp_lt_u32 s3, 4")
    e("s_cbranch_scc1 L_kpart")
    e("s_setprio 2"); e.note("================= K part =================")
    e.label("L_kpart")
    e("v_bfe_u32 v17, v0, 2, 2")
    e("v_lshlrev_b32 v1, 8, v17")
    e("v_lshrrev_b32 v2, 4, v0")
    e("v_lshl_add_u32 v1, v2, 6, v1")
    e("v_and_b32 v3, 3, v0")
    e("v_lshl_add_u32 v1, v3, 4, v1")
    kvloads(18, 1)
    stamp("kissued")
    e("v_lshlrev_b32 v18, 7, v2")
    e("v_lshl_add_u32 v18, v3, 5, v18")
    e("v_lshl_add_u32 v18, v17, 3, v18")
    e("s_lshl_b32 s42, s10, 9")
    e("v_add_u32 v18, s42, v18"); e.note("P write address")
    e("v_lshlrev_b32 v16, 8, v3")
    e("v_lshl_add_u32 v16, v2, 6, v16")
    e("v_lshl_add_u32 v16, v17, 4, v16"); e.note("q operand address")
    e("s_lshl_b32 s13, s4, 2")
    e("s_add_u32 s13, s13, s6"); e.note("hh = hkv*4 + (r>>3)")
    e("s_waitcnt lgkmcnt(0)")
    make_tag()
    e("s_cmp_lg_u32 s3, 3")
    e("s_cbranch_scc1 L_qw"); e.note("---- G (wv 3): gather the q partials")
    e("v_lshlrev_b32 v20, 4, v0")
    e("v_add_u32 v21, 0x2000, v20")
    e("v_add_u32 v22, 0x4000, v20")
    e("v_add_u32 v23, 0x6000, v20")
    e("s_lshl_b32 s40, s4, 15")
    e("s_lshl_b32 s41, s6, 11")
    e("s_add_u32 s40, s40, s41")
    wsaddr(40, 40, WS_QP)
    xtags(44)
    e(f"s_mov_b32 s48, {mixafter-1}")
    e("v_mov_b32 v10, 1")
    lds_wait("qpub", F_QPUB, "eq", 0, 19, 8, sleep=2)
    if g1: e(f"s_sleep {g1}")
    stamp("gath0")
    gather32("qpoll", [f"global_load_dwordx4 v[{32+4*i}:{35+4*i}], v{20+i//2}, s[40:41] offset:{1024*(i%2)} sc1" for i in range(8)], 44, 0, mix=True)
    count("qn", 53)
    e("v_and_b32 v8, 0x80, v9"); e.note("some producer sits on another XCD")
    e("v_cmp_ne_u32 vcc, 0, v8")
    e("v_mov_b32 v8, %d" % (1 if forcex else 0))
    e("s_cbranch_vccz L_samex")
    for r in range(32, 64): e(f"v_and_b32 v{r}, v29, v{r}")
    e("v_mov_b32 v8, 1")
    e.label("L_samex")
    e(f"ds_write_b32 v19, v8 offset:{F_SX}")
    e(f"ds_or_b32 v19, v8 offset:{F_MIX}")
    sum4()
    for i in range(4):
        e(f"v_cvt_pk_bf16_f32 v{4+i}, v{32+2*i}, v{33+2*i}")
    e("v_and_b32 v20, 15, v0")
    e("v_lshlrev_b32 v20, 1, v20")
    e("v_lshl_add_u32 v20, v2, 7, v20")
    for hf in range(2):
        for c in range(4):
            op = "ds_write_b16_d16_hi" if c & 1 else "ds_write_b16"
            e(f"{op} v20, v{4+2*hf+c//2} offset:{L_Q+hf*512+c*32}")
    e("v_mov_b32 v8, 1")
    e(f"ds_write_b32 v19, v8 offset:{F_QRDY}")
    e("s_branch L_qwok")
    e.label("L_qw")
    e(f"ds_read_b64 v[20:21], v19 offset:{F_QRDY}")
    e("s_waitcnt lgkmcnt(0)")
    e("v_readfirstlane_b32 s40, v21")
    e("v_cmp_eq_u32 vcc, 0, v20")
    e("s_cmp_eq_u32 s100, 0")
    e("s_cbranch_scc1 L_qw2")
    e("s_cmp_eq_u32 s40, 0")
    e("s_cbranch_scc1 L_qw2")
    e("s_mov_b32 s100, 0"); e.note("group spans XCDs (or is very late): repeat the tile store write-through")
    e("s_waitcnt vmcnt(0)")
    e("global_store_dwordx4 v7, v[12:15], s[58:59] sc1")
    e.label("L_qw2")
    poll_tail("L_qw", "L_qwok", 2)
    e(f"ds_read_b128 v[4:7], v16 offset:{L_Q}")
    e("s_waitcnt vmcnt(0) lgkmcnt(0)")
    stamp("qrecv")
    def dreg(n): return 8 if n == 0 else 64 + 4 * (n - 1)
    for n in range(16):
        d = dreg(n)
        e(f"v_mfma_f32_16x16x32_bf16 v[{d}:{d+3}], v[{64+4*n}:{67+4*n}], v[4:7], 0")
    for k in range(3):
        for n in range(16):
            d = dreg(n); z = n // 4; t = 12 + n % 4
            c = [c for c in range(4) if c != z][k]
            s1 = f"v{d+z}" if k == 0 else f"v{t}"
            e(f"v_add_f32_dpp v{t}, v{d+c}, {s1} row_ror:{4*((z-c)%4)} row_mask:0xf bank_mask:{1<<z:#x}")
    round4(12, 20, 21)
    for i in range(4): e(f"v_mul_f32 v{12+i}, {SCALE:#x}, v{12+i}")
    round4(12, 20, 21)
    e("v_max3_f32 v22, v12, v13, v14")
    e("v_max_f32 v22, v22, v15")
    allred("v_max_f32", 22, 24, lanes16=(4, 8))
    e(f"s_mov_b32 s43, {LOG2E:#x}")
    e("v_mul_f32 v24, s43, v22")
    for i in range(4): e(f"v_fma_f32 v{12+i}, v{12+i}, s43, -v24")
    for i in range(4): e(f"v_exp_f32 v{12+i}, v{12+i}")
    e("v_cvt_pk_bf16_f32 v20, v12, v13")
    e("v_cvt_pk_bf16_f32 v21, v14, v15")
    e(f"ds_write_b64 v18, v[20:21] offset:{L_P}")
    e("v_add_f32 v23, v12, v13")
    e("v_add_f32 v25, v14, v15")
    e("v_add_f32 v23, v23, v25")
    allred("v_add_f32", 23, 24, lanes16=(4, 8))
    e("s_lshl_b32 s42, s10, 3")
    e("v_lshl_add_u32 v24, v3, 6, s42")
    e(f"ds_write_b64 v24, v[22:23] offset:{L_ST}")
    e("s_lshl_b32 s42, s10, 2")
    e("v_mov_b32 v26, s42")
    e("v_mov_b32 v27, 1")
    e(f"ds_write_b32 v26, v27 offset:{F_PF}")
    stamp("smax")
    e("s_setprio 3")
    e("s_cmp_ge_u32 s3, 4")
    e("s_cbranch_scc1 L_owave")
    e("s_cmp_eq_u32 s3, 2")
    e("s_cbranch_scc1 L_fwave")
    e("s_cmp_lt_u32 s3, 2")
    e("s_cbranch_scc1 L_rwave"); e.note("---- G (wv 3): softmax normalisation factors f[batch][s] of this WG's output head")
    e("s_lshl_b32 s54, s13, 9")
    wsaddr(54, 54, WS_STAT)
    e("v_and_b32 v6, 31, v0")
    e("v_lshlrev_b32 v7, 2, v6")
    e("v_lshlrev_b32 v6, 4, v6")
    e("s_not_b32 s27, s26")
    lds_wait("svi", F_VI, "gt", svi, 19, 2, sleep=2)
    e.label("L_spoll")
    e("global_load_dwordx4 v[40:43], v6, s[54:55] sc1")
    e("s_waitcnt vmcnt(0)")
    untag([40, 41])
    e("v_xor_b32 v42, s26, v42")
    e("v_xor_b32 v43, s27, v43")
    e("v_or_b32 v12, v40, v41")
    e("v_and_b32 v12, 0xff, v12")
    e("v_or3_b32 v12, v12, v42, v43")
    e("v_cmp_ne_u32 vcc, 0, v12")
    poll_tail("L_spoll", "L_sok", sleep=8)
    def red_s(op, r):
        for m in ("quad_perm:[1,0,3,2]", "quad_perm:[2,3,0,1]", "row_half_mirror"):
            e(f"{op}_dpp v{r}, v{r}, v{r} {m} row_mask:0xf bank_mask:0xf")
    e("v_mov_b32 v12, v40")
    red_s("v_max_f32", 12)
    e("v_sub_f32 v12, v40, v12")
    e("v_mul_f32 v12, s43, v12")
    e("v_exp_f32 v12, v12")
    e("v_mul_f32 v14, v12, v41")
    red_s("v_add_f32", 14)
    e("v_rcp_f32 v14, v14")
    e("v_mul_f32 v12, v12, v14")
    e(f"ds_write_b32 v7, v12 offset:{L_FAC}")
    lds_add(F_RP, 27, restore=False)
    stamp("Ostat")
    flush(["gath0", "qrecv", "qn", "Ostat"])

    e.label("L_rwave")
    e("v_and_b32 v1, 7, v0")
    e("v_lshlrev_b32 v1, 2, v1")
    e("v_lshrrev_b32 v3, 5, v0")
    e("s_lshl_b32 s46, s3, 1")
    e("v_add_u32 v3, s46, v3"); e.note("head")
    e("v_lshlrev_b32 v4, 6, v3")
    e(f"v_mul_u32_u24 v5, {PARTH}, v3")
    e("v_and_b32 v6, 31, v0")
    e("v_lshl_add_u32 v5, v6, 4, v5")
    e("s_lshl_b32 s46, s4, 5")
    e("s_add_u32 s46, s46, s5")
    e(f"s_mul_i32 s46, s46, {OB1S}")
    e("s_lshl_b32 s47, s3, 10")
    e("s_add_u32 s46, s46, s47")
    wsaddr(46, 46, WS_OB1)
    e("s_lshl_b32 s48, s4, 11")
    e("s_lshl_b32 s49, s5, 4")
    e("s_add_u32 s48, s48, s49")
    wsaddr(48, 48, WS_STAT)
    e("v_lshlrev_b32 v7, 4, v0")
    e("v_lshlrev_b32 v6, 9, v3")
    lds_wait("rpf", F_PF, "eq", 0, 1, 2)
    e(f"ds_read_b32 v2, v19 offset:{F_SX}")
    for i in range(4):
        e(f"ds_read_b128 v[{32+4*i}:{35+4*i}], v4 offset:{L_ST+16*i}")
    e("s_waitcnt lgkmcnt(0)")
    e("v_readfirstlane_b32 s36, v2")
    e("v_max3_f32 v8, v32, v34, v36")
    e("v_max3_f32 v8, v8, v38, v40")
    e("v_max3_f32 v8, v8, v42, v44")
    e("v_max_f32 v8, v8, v46")
    for w in range(8): e(f"v_sub_f32 v{32+2*w}, v{32+2*w}, v8")
    for w in range(8): e(f"v_mul_f32 v{32+2*w}, s43, v{32+2*w}")
    for w in range(8): e(f"v_exp_f32 v{32+2*w}, v{32+2*w}")
    e("v_mul_f32 v9, v32, v33")
    for w in range(1, 8): e(f"v_fmac_f32 v9, v{32+2*w}, v{33+2*w}")
    tag([8, 9])
    e("v_mov_b32 v10, s26")
    e("v_not_b32 v11, v10")
    e("s_mov_b32 s52, 1")
    e("s_mov_b32 s53, 1")
    e("s_mov_b64 exec, s[52:53]")
    e("s_cmp_lg_u32 s36, 0")
    store2("rs", "global_store_dwordx4 v6, v[8:11], s[48:49]")
    e("s_mov_b64 exec, -1")
    if pf1 == 2:
        e("s_cbranch_scc1 L_nopf1")
        e("global_store_dwordx4 v7, v[8:11], s[46:47]")
        e.label("L_nopf1")
    elif pf1: e("global_load_dwordx4 v[100:103], v7, s[46:47] sc1")
    lds_wait("rtk", F_TK, "gt", 8, 19, 2, sleep=1)
    e.label("L_rdone")
    e(f"ds_read_b32 v2, v19 offset:{F_DONE}")
    for w in range(8):
        e(f"ds_read_b128 v[{64+4*w}:{67+4*w}], v5 offset:{L_PART+w*PARTW}")
    e("s_waitcnt lgkmcnt(8)")
    e("v_cmp_gt_u32 vcc, 8, v2")
    poll_tail("L_rdone", "L_rdoneok", 0)
    for w in range(8):
        e(f"s_waitcnt lgkmcnt({7-w})")
        if w == 7: stamp("Rgo")
        for hh in range(2):
            x = f"v[{64+4*w+2*hh}:{65+4*w+2*hh}]"
            acc = f"v[{12+2*hh}:{13+2*hh}]"
            if w == 0:
                e(f"v_pk_mul_f32 {acc}, {x}, v[32:33] op_sel_hi:[1,0]")
            else:
                e(f"v_pk_fma_f32 {acc}, {x}, v[{32+2*w}:{33+2*w}], {acc} op_sel_hi:[1,0,1]")
    e("s_cmp_lg_u32 s36, 0")
    tag([12, 13, 14, 15])
    store2("ro", "global_store_dwordx4 v7, v[12:15], s[46:47]")
    lds_add(F_RP, 27, restore=False)
    stamp("Rpub")
    if stamps:
        e("s_cmp_lg_u32 s3, 0")
        e("s_cbranch_scc1 L_exit")
    flush(["start", "xland", "lndone", "Rgo", "Rpub"])

    e.label("L_owave")
    e("s_sub_u32 s11, s3, 4"); e.note("z")
    e("s_lshl_b32 s12, s13, 2")
    e("s_add_u32 s12, s12, s11"); e.note("rb")
    e("s_mul_i32 s52, s11, 6144")
    e(f"s_add_u32 s52, s52, {L_WO}")
    e("v_lshlrev_b32 v11, 5, v2")
    e("v_lshl_add_u32 v11, v3, 3, v11")
    e("v_add_u32 v11, s52, v11")
    e("v_lshl_add_u32 v10, v17, 7, v11"); e.note("w_down tr address")
    e("v_bfe_u32 v34, v0, 2, 1")
    e("v_lshl_add_u32 v11, v34, 11, v11")
    e("v_bfe_u32 v34, v0, 3, 1")
    e("v_lshl_add_u32 v11, v34, 10, v11"); e.note("wo tr address")
    e("s_lshl_b32 s42, s7, 7")
    e("s_lshl_b32 s46, s12, 15")
    e("s_add_u32 s46, s46, s42")
    e("s_add_u32 s46, s24, s46")
    e("s_addc_u32 s47, s25, 0")
    e("s_add_u32 s44, s32, s42")
    e("s_addc_u32 s45, s33, 0")
    e("v_lshrrev_b32 v4, 3, v0")
    e("v_and_b32 v30, 7, v0")
    e("v_lshlrev_b32 v30, 4, v30")
    e("v_lshl_add_u32 v31, v4, 10, v30")
    ctg(48, 49)
    e("s_lshl_b32 s48, s48, 6")
    e("s_lshl_b32 s49, s11, 2")
    e("s_add_u32 s48, s48, s49"); e.note("row = ctg*64 + 4z + (k>>2) + (k&3)*16")
    e(f"s_cmp_eq_u32 s14, {NT:#x}")
    e("s_cselect_b32 s48, 0, s48")
    e("v_and_b32 v36, 3, v4")
    e("v_lshrrev_b32 v34, 2, v4")
    e("v_lshl_add_u32 v34, v36, 4, v34")
    e("v_add_u32 v34, s48, v34")
    e("v_lshl_add_u32 v34, v34, 10, v30")
    e("v_add_u32 v35, 2048, v34")
    if tlbw:
        e("s_mov_b64 exec, 1")
        e(f"global_load_dword v90, v31, s[46:47]{wf}")
        e(f"global_load_dword v91, v34, s[44:45]{wf}")
        e("s_mov_b64 exec, -1")
    e("v_bfe_u32 v5, v0, 3, 2")
    e("v_lshrrev_b32 v17, 5, v0")
    e("v_lshlrev_b32 v7, 5, v5")
    e("v_lshl_add_u32 v7, v17, 4, v7"); e.note("factor address")
    e("v_lshlrev_b32 v16, 3, v5")
    e("v_lshl_add_u32 v16, v17, 2, v16")
    e(f"v_mul_u32_u24 v16, {OB1S}, v16")
    e("v_add_u32 v16, v16, v30"); e.note("hop-1 address")
    e("v_bfe_u32 v4, v0, 2, 3")
    e("v_lshlrev_b32 v4, 2, v4")
    e("v_lshl_add_u32 v4, v3, 5, v4"); e.note("A operand bpermute address")
    e("v_and_b32 v6, 15, v0")
    e("s_lshl_b32 s49, s11, 7")
    e("v_lshl_add_u32 v6, v6, 3, s49"); e.note("h operand address")
    e("v_lshlrev_b32 v18, 4, v0")
    e(f"v_add_u32 v26, {L_OR}, v18")
    e("s_lshl_b32 s49, s11, 10")
    e("v_add_u32 v27, s49, v26")
    e("v_mov_b32 v1, 1")
    e("v_lshlrev_b32 v12, 7, v0")
    e("v_mov_b32 v13, s26")
    for i in range(8): e(f"v_mov_b32 v{56+i}, 0")
    e("s_mov_b32 m0, s52")
    if worot == "rb":
        e("s_add_u32 s58, s11, s13")
        e("s_and_b32 s58, s58, 3")
    elif worot == "cs":
        e("s_add_u32 s58, s11, s5")
        e("s_and_b32 s58, s58, 3")
    if wotime:
        lds_wait("wovi", F_VI, "gt", 8, 19, 2, sleep=2)
        e.label("L_wot")
        e("s_sleep 1")
        e("s_memrealtime s[56:57]")
        e("s_waitcnt lgkmcnt(0)")
        e(f"s_sub_u32 s56, s56, s{SB}")
        e(f"s_cmp_lt_u32 s56, {wotime}")
        e("s_cbranch_scc1 L_wot")
    else: lds_wait("wotk", F_TK if t2at == tkat else F_T2, "gt", wodone, 19, 2, sleep=2)
    wf2 = wf if wof is None else ((" " + wof) if wof else "")
    if worot:
        for i in range(4):
            e(f"s_xor_b32 s56, s58, {i}")
            e("s_lshl_b32 s57, s56, 10")
            e("s_add_u32 m0, s52, s57")
            e("s_lshl_b32 s56, s56, 13")
            e("s_add_u32 s56, s46, s56")
            e("s_addc_u32 s57, s47, 0")
            e(f"global_load_lds_dwordx4 v31, s[56:57]{wf2}")
        e("s_add_u32 m0, s52, 4096")
    else:
        for i in range(4):
            e(f"global_load_lds_dwordx4 v31, s[46:47]{wf2}")
            e("s_add_u32 m0, m0, 1024")
            if i < 3:
                e(f"s_add_u32 s46, s46, 8192")
                e(f"s_addc_u32 s47, s47, 0")
    e(f"s_cmp_eq_u32 s14, {NT:#x}")
    e("s_cbranch_scc1 L_nowd")
    e(f"global_load_lds_dwordx4 v34, s[44:45]{wf2}")
    e("s_add_u32 m0, m0, 1024")
    e(f"global_load_lds_dwordx4 v35, s[44:45]{wf2}")
    e.label("L_nowd")
    e(f"s_mul_i32 s44, s4, {32*OB1S}")
    e("s_and_b32 s45, s12, 15")
    e("s_lshl_b32 s45, s45, 7")
    e("s_add_u32 s44, s44, s45")
    wsaddr(44, 44, WS_OB1 + 3 * OB1S // 2)
    e("s_lshl_b32 s46, s7, 5")
    e("s_add_u32 s46, s46, s13")
    e(f"s_mul_i32 s46, s46, {OB2S}")
    wsaddr(46, 46, WS_OB2)
    e("s_lshl_b32 s50, s7, 12")
    e("s_add_u32 s50, s50, s13" if hmode == 1 else "s_add_u32 s50, s50, s4")
    wsaddr(50, 50, WS_HF2)
    e("s_mov_b32 s54, -1")
    e("s_mov_b32 s55, 0")
    if hmode == 2:
        e("s_cmp_eq_u32 s6, 0")
        e("s_cselect_b32 s49, 3, 99")
    else:
        e("s_mov_b32 s49, %d" % (3 if hmode else 99))
    lds_wait("orp", F_RP, "gt", 4, 19, 2, sleep=1)
    def oloads(base=40):
        for i in range(4):
            e(f"global_load_dwordx4 v[{base+4*i}:{base+3+4*i}], v16, s[44:45] offset:{i*OB1S-3*OB1S//2} sc1")
    def ocheck(base, pend):
        for i in range(4):
            e(f"s_waitcnt vmcnt({3-i+pend})")
            b = base + 4 * i
            untag(range(b, b + 4))
            for hh in range(2):
                x = f"v[{b+2*hh}:{b+1+2*hh}]"
                acc = f"v[{20+2*hh}:{21+2*hh}]"
                fp = f"v[{32+2*(i//2)}:{33+2*(i//2)}]"
                if i == 0: e(f"v_pk_mul_f32 {acc}, {x}, {fp} op_sel_hi:[1,0]")
                elif i % 2 == 0: e(f"v_pk_fma_f32 {acc}, {x}, {fp}, {acc} op_sel_hi:[1,0,1]")
                else: e(f"v_pk_fma_f32 {acc}, {x}, {fp}, {acc} op_sel:[0,1,0] op_sel_hi:[1,1,1]")
            if i == 0:
                e(f"v_or3_b32 v28, v{b}, v{b+1}, v{b+2}")
                e(f"v_or_b32 v28, v28, v{b+3}")
            else:
                e(f"v_or3_b32 v28, v28, v{b}, v{b+1}")
                e(f"v_or3_b32 v28, v28, v{b+2}, v{b+3}")
        e("v_and_b32 v28, 0xff, v28")
        e("v_cmp_ne_u32 vcc, 0, v28")
        e("s_cbranch_vccz L_ook")
        e("s_mov_b64 exec, vcc")
    oloads()
    stamp("Ogo")
    if stamps: e("s_mov_b32 s53, s15")
    e(f"ds_read_b128 v[32:35], v7 offset:{L_FAC}")
    e(f"ds_read_b64 v[38:39], v6 offset:{L_H}")
    e("s_waitcnt vmcnt(4)")
    for n in range(4):
        e(f"ds_read_b64_tr_b16 v[{64+2*n}:{65+2*n}], v10 offset:{4096+n*512}")
    for n in range(8):
        e(f"ds_read_b64_tr_b16 v[{96+2*n}:{97+2*n}], v11 offset:{n*128}")
    e("s_waitcnt lgkmcnt(0)" if stamps else "s_waitcnt lgkmcnt(8)")
    for n in range(4):
        acc = f"v[{56+4*(n%2)}:{59+4*(n%2)}]"
        if n == 0:
            e(f"s_cmp_eq_u32 s14, {NT:#x}")
            e("s_cbranch_scc1 L_ochk")
        e(f"v_mfma_f32_4x4x4_16b_bf16 {acc}, v[38:39], v[{64+2*n}:{65+2*n}], {acc} cbsz:4 abid:{n}")
    if opipe:
        e.label("L_ochk")
        oloads(72)
        ocheck(40, 4)
        oloads(40)
        ocheck(72, 4)
        e("s_sub_u32 s15, s15, 1")
        e("s_cbranch_scc0 L_ochk")
        e("s_mov_b32 s15, 0")
    else:
        e("s_branch L_ochk")
        e.label("L_opoll")
        if osleep: e(f"s_sleep {osleep}")
        oloads()
        e.label("L_ochk")
        ocheck(40, 0)
        e("s_sub_u32 s15, s15, 1")
        e("s_cbranch_scc0 L_opoll")
        e("s_mov_b32 s15, 0")
    e.label("L_ook")
    e("s_mov_b64 exec, 1")
    e(f"ds_add_rtn_u32 v2, v19, v1 offset:{F_GT}")
    e("s_mov_b64 exec, -1")
    stamp("h1")
    count("h1n", 53)
    e("v_permlane32_swap_b32 v20, v21")
    e("v_permlane32_swap_b32 v22, v23")
    e("v_add_f32 v20, v20, v21")
    e("v_add_f32 v22, v22, v23")
    e("v_cvt_pk_bf16_f32 v20, v20, v22")
    e("ds_bpermute_b32 v24, v4, v20")
    e("ds_bpermute_b32 v25, v4, v20 offset:128")
    e("s_waitcnt lgkmcnt(2)")
    e("v_readfirstlane_b32 s48, v2")
    e("s_cmp_lg_u32 s48, s49")
    e("s_cbranch_scc1 L_nohint2")
    e("s_mov_b64 exec, s[54:55]")
    e("global_store_byte v12, v13, s[50:51] sc1"); e.note("timing hint for the 32 final reducers")
    e("s_mov_b64 exec, -1")
    e.label("L_nohint2")
    e("s_waitcnt lgkmcnt(0)")
    for n in range(8):
        acc = f"v[{56+4*(n%2)}:{59+4*(n%2)}]"
        e(f"v_mfma_f32_4x4x4_16b_bf16 {acc}, v[24:25], v[{96+2*n}:{97+2*n}], {acc} cbsz:4 abid:{n}")
    e("v_pk_add_f32 v[56:57], v[56:57], v[60:61]")
    e("v_pk_add_f32 v[58:59], v[58:59], v[62:63]")
    e("ds_write_b128 v27, v[56:59]")
    e("s_mov_b64 exec, 1")
    e(f"ds_add_rtn_u32 v2, v19, v1 offset:{F_OT}")
    e("s_mov_b64 exec, -1")
    for i in range(4):
        e(f"ds_read_b128 v[{112+4*i}:{115+4*i}], v26 offset:{1024*i}")
    e("s_waitcnt lgkmcnt(4)")
    e("v_readfirstlane_b32 s48, v2")
    e("s_cmp_lg_u32 s48, 3")
    e("s_cbranch_scc1 L_exit")
    e("s_waitcnt lgkmcnt(2)")
    e("v_pk_add_f32 v[112:113], v[112:113], v[116:117]")
    e("v_pk_add_f32 v[114:115], v[114:115], v[118:119]")
    e("s_waitcnt lgkmcnt(0)")
    e("v_pk_add_f32 v[120:121], v[120:121], v[124:125]")
    e("v_pk_add_f32 v[122:123], v[122:123], v[126:127]")
    e("v_pk_add_f32 v[112:113], v[112:113], v[120:121]")
    e("v_pk_add_f32 v[114:115], v[114:115], v[122:123]")
    tag([112, 113, 114, 115])
    e("global_store_dwordx4 v18, v[112:115], s[46:47] sc1")
    e(f"ds_write_b32 v19, v1 offset:{F_ODONE}")
    stamp("Opub")
    flush(["kissued", "smax", "Ogo", "h1", "h1n", "Opub"])

    e.label("L_fwave")
    e("s_lshl_b32 s40, s13, 13")
    wsaddr(40, 40, WS_GP + 4096)
    e("v_lshlrev_b32 v20, 4, v0")
    e("s_lshl_b32 s44, s4, 7")
    e("s_lshl_b32 s45, s5, 2")
    e("s_add_u32 s44, s44, s45")
    e("v_and_b32 v3, 1, v0")
    e("v_lshl_add_u32 v4, v3, 1, s44")
    e("v_bfe_u32 v5, v0, 4, 1")
    e("v_lshl_add_u32 v4, v5, 11, v4")
    e("v_lshrrev_b32 v5, 5, v0")
    e("v_lshl_add_u32 v4, v5, 10, v4")
    e("global_load_ushort v6, v4, s[16:17]")
    if tlbo: e("global_load_ushort v90, v4, s[34:35]")
    e(f"s_cmp_eq_u32 s14, {NT:#x}")
    e("s_cbranch_scc1 L_noh")
    gather32("hpoll", [f"global_load_dwordx4 v[{32+4*i}:{35+4*i}], v20, s[40:41] offset:{1024*i-4096} sc1" for i in range(8)], None, 8)
    stamp("Oh")
    sum4()
    round4(32, 8, 9)
    round4(36, 8, 9)
    e("v_pk_mul_f32 v[32:33], v[32:33], v[36:37]")
    e("v_pk_mul_f32 v[34:35], v[34:35], v[38:39]")
    e("v_cvt_pk_bf16_f32 v32, v32, v33")
    e("v_cvt_pk_bf16_f32 v33, v34, v35")
    e("v_and_b32 v21, 15, v0")
    e("v_lshlrev_b32 v21, 5, v21")
    e("v_lshl_add_u32 v21, v2, 3, v21")
    e(f"ds_write_b64 v21, v[32:33] offset:{L_H}")
    e.label("L_noh")
    lds_add(F_RP, 27)
    e("s_waitcnt vmcnt(0)")
    e("v_lshlrev_b32 v6, 16, v6")
    e("v_lshrrev_b32 v8, 1, v0")
    e(f"v_mul_u32_u24 v8, {OB2S}, v8")
    e("v_lshl_add_u32 v8, v3, 4, v8")
    e(f"s_mul_i32 s46, s4, {32*OB2S}")
    e("s_lshl_b32 s47, s5, 5")
    e("s_add_u32 s46, s46, s47")
    wsaddr(46, 46, WS_OB2)
    e("s_mov_b32 s48, 0x00030003")
    e("s_mov_b32 s49, 0x00030003")
    e(f"v_mov_b32 v12, {WS_EP:#x}")
    e("v_mov_b32 v13, s26")
    e("s_lshl_b32 s50, s4, 5")
    e("s_add_u32 s50, s50, s5")
    e("s_lshl_b32 s50, s50, 7")
    wsaddr(50, 50, WS_HF2)
    e(f"s_mul_i32 s66, s{TG}, 0x01010101")
    e("s_mov_b32 s67, s66")
    if fgate == 'rp': lds_wait("frp", F_RP, "gt", 4, 19, 2, sleep=2)
    else: lds_wait("frp", F_GT, "gt", fgate, 19, 2, sleep=1)
    if hmode:
        e.label("L_hw2")
        if hmode == 1:
            e("s_load_dwordx8 s[56:63], s[50:51], 0 glc")
            e("s_waitcnt lgkmcnt(0)")
            for i in range(4): e(f"s_xor_b64 s[{56+2*i}:{57+2*i}], s[{56+2*i}:{57+2*i}], s[66:67]")
            e("s_or_b64 s[56:57], s[56:57], s[58:59]")
            e("s_or_b64 s[60:61], s[60:61], s[62:63]")
            e("s_or_b64 s[56:57], s[56:57], s[60:61]")
        else:
            e("s_load_dwordx2 s[56:57], s[50:51], 0 glc")
            e(f"ds_read_b32 v2, v19 offset:{F_ODONE}")
            e("s_waitcnt lgkmcnt(0)")
            e("v_cmp_eq_u32 vcc, 0, v2")
            e("s_cmp_lg_u64 s[56:57], s[66:67]")
        e("s_cbranch_scc0 L_hw2ok")
        e("s_sub_u32 s15, s15, 1")
        e("s_cbranch_scc0 L_hw2")
        e("s_mov_b32 s15, 0")
        e.label("L_hw2ok")
        if hmode == 2: e("s_cbranch_vccz L_fodok")
    lds_wait("fod", F_ODONE, "eq", 0, 19, 2, sleep=0)
    if stamps: e("s_mov_b32 s53, s15")
    e.label("L_fpoll")
    e(f"global_load_dwordx4 v[20:23], v8, s[46:47] {fld}")
    e("s_waitcnt vmcnt(0)")
    stamp("h2")
    untag(range(20, 24))
    e("v_or3_b32 v28, v20, v21, v22")
    e("v_or_b32 v28, v28, v23")
    e("v_and_b32 v28, 0xff, v28")
    e("v_cmp_ne_u32 vcc, 0, v28")
    e("s_cbranch_vccz L_fok")
    e("s_mov_b64 exec, vcc")
    if fsleep: e(f"s_sleep {fsleep}")
    e("s_sub_u32 s15, s15, 1")
    e("s_cbranch_scc0 L_fpoll")
    e("s_mov_b32 s15, 0")
    e.label("L_fok")
    e("s_mov_b64 exec, -1")
    e("v_permlane32_swap_b32 v20, v21")
    e("v_permlane32_swap_b32 v22, v23")
    e("v_add_f32 v20, v20, v21")
    e("v_add_f32 v22, v22, v23")
    e("v_permlane16_swap_b32 v20, v22")
    e("v_add_f32 v20, v20, v22")
    count("h2n", 53)
    for sh in (2, 4, 8):
        e(f"v_add_f32_dpp v20, v20, v20 row_ror:{sh} row_mask:0xf bank_mask:0xf")
    e("v_add_f32 v20, v20, v6")
    e("v_cvt_pk_bf16_f32 v20, v20, v20")
    e("s_mov_b64 exec, s[48:49]")
    e("global_store_short v4, v20, s[34:35]")
    e("s_cmp_lg_u32 s2, 0")
    e("s_cbranch_scc1 L_fend")
    e("s_mov_b64 exec, 1")
    e("global_store_dword v12, v13, s[38:39]"); e.note("hand-off generation for the next launch")
    e.label("L_fend")
    if padto:
        e.label("L_pad")
        e("s_memrealtime s[74:75]")
        e("s_waitcnt lgkmcnt(0)")
        e("s_sub_u32 s74, s74, s72")
        e(f"s_cmp_lt_u32 s74, {padto*100}")
        e("s_cbranch_scc1 L_pad")
    if stamps:
        e("s_waitcnt vmcnt(0)")
        stamp("end")
    flush(["wland", "qpub", "Oh", "h2", "h2n", "end"])

    e.label("L_ln")
    e("s_waitcnt vmcnt(0)")
    stamp("xland")
    for i in range(16):
        e(f"v_lshlrev_b32 v{80+2*i}, 16, v{64+i}")
        e(f"v_and_b32 v{81+2*i}, 0xffff0000, v{64+i}")
    e("v_pk_add_f32 v[20:21], v[80:81], v[82:83]")
    e("v_pk_add_f32 v[22:23], v[84:85], v[86:87]")
    for i in range(4, 16):
        acc = 20 + 2 * (i % 2)
        e(f"v_pk_add_f32 v[{acc}:{acc+1}], v[{acc}:{acc+1}], v[{80+2*i}:{81+2*i}]")
    e("v_pk_add_f32 v[20:21], v[20:21], v[22:23]")
    e("v_add_f32 v20, v20, v21")
    for sh in (8, 4, 2, 1):
        e(f"v_add_f32_dpp v20, v20, v20 row_ror:{sh} row_mask:0xf bank_mask:0xf")
    e("v_mul_f32 v20, 0x3b000000, v20")
    e("v_cvt_pk_bf16_f32 v22, v20, v20")
    e("v_lshlrev_b32 v22, 16, v22")
    e("v_sub_f32 v24, v20, v22")
    for i in range(16):
        e(f"v_pk_add_f32 v[{80+2*i}:{81+2*i}], v[{80+2*i}:{81+2*i}], v[22:23] op_sel_hi:[1,0] neg_lo:[0,1] neg_hi:[0,1]")
    e("v_pk_mul_f32 v[26:27], v[80:81], v[80:81]")
    e("v_pk_mul_f32 v[28:29], v[82:83], v[82:83]")
    for i in range(2, 16):
        acc = 26 + 2 * (i % 2)
        e(f"v_pk_fma_f32 v[{acc}:{acc+1}], v[{80+2*i}:{81+2*i}], v[{80+2*i}:{81+2*i}], v[{acc}:{acc+1}]")
    e("v_pk_add_f32 v[26:27], v[26:27], v[28:29]")
    e("v_add_f32 v26, v26, v27")
    for sh in (8, 4, 2, 1):
        e(f"v_add_f32_dpp v26, v26, v26 row_ror:{sh} row_mask:0xf bank_mask:0xf")
    e("v_mul_f32 v26, 0x3b000000, v26")
    e("v_fma_f32 v26, -v24, v24, v26")
    e("v_max_f32 v26, 0, v26")
    def r1(r):
        e(f"v_cvt_pk_bf16_f32 v{r}, v{r}, v{r}")
        e(f"v_lshlrev_b32 v{r}, 16, v{r}")
    r1(26)
    e("v_add_f32 v26, 0x3727c5ac, v26")
    r1(26)
    e("v_sqrt_f32 v26, v26")
    r1(26)
    e("v_rcp_f32 v26, v26")
    round4(80, 64, 65)
    round4(84, 66, 67)
    for i in range(4):
        e(f"v_pk_mul_f32 v[{80+2*i}:{81+2*i}], v[{80+2*i}:{81+2*i}], v[26:27] op_sel_hi:[1,0]")
    for i in range(4):
        e(f"v_cvt_pk_bf16_f32 v{20+i}, v{80+2*i}, v{81+2*i}")
    e("v_lshlrev_b32 v2, 4, v0")
    e(f"ds_write_b128 v2, v[20:23] offset:{L_XN}")
    e("v_mov_b32 v1, 1")
    e(f"ds_write_b32 v19, v1 offset:{F_XN}")
    stamp("lndone")
    e("s_branch L_kpart"); e.note("================= projection tiles (wv 1: gate/up, wv 2: wq) =================")
    e.label("L_tileg")
    e("v_lshlrev_b32 v7, 4, v0")
    e("v_lshrrev_b32 v1, 4, v0")
    e("s_lshl_b32 s58, s4, 2")
    e("s_add_u32 s58, s58, s6")
    e("s_lshl_b32 s58, s58, 3")
    e("s_lshl_b32 s57, s42, 1")
    e("s_add_u32 s58, s58, s57")
    e("s_add_u32 s58, s58, s55")
    e("s_lshl_b32 s58, s58, 10")
    e(f"s_add_u32 s58, s58, {WS_GP:#x}")
    e(f"s_movk_i32 s45, {L_W}")
    e(f"v_mov_b32 v10, {F_JUNK}")
    e("s_branch L_tile")
    e.label("L_tileq")
    e("v_and_b32 v3, 15, v0")
    e("v_lshrrev_b32 v1, 4, v0")
    e("v_lshlrev_b32 v7, 11, v1")
    e("v_lshl_add_u32 v7, v3, 4, v7")
    e("s_lshl_b32 s58, s4, 15")
    e("s_lshl_b32 s53, s42, 13")
    e("s_add_u32 s58, s58, s53")
    e("s_lshl_b32 s53, s43, 8")
    e("s_add_u32 s58, s58, s53")
    e(f"s_mov_b32 s45, {L_W+16384}")
    e(f"v_mov_b32 v10, {F_QPUB}")
    e.label("L_tile")
    e("v_lshrrev_b32 v4, 2, v0")
    e("v_lshlrev_b32 v4, 7, v4")
    e("v_and_b32 v5, 3, v0")
    e("v_lshl_add_u32 v4, v5, 3, v4")
    e("v_add_u32 v4, s45, v4")
    e("v_bfe_u32 v8, v0, 2, 2")
    e("v_lshlrev_b32 v6, 8, v8")
    e("v_lshl_add_u32 v6, v1, 3, v6")
    e(f"v_add_u32 v6, {L_XN}, v6")
    wsaddr(58, 58, 0)
    e("v_mov_b32 v11, 1")
    e("s_waitcnt lgkmcnt(0)")
    make_tag()
    xtags(60, only_wave=2)
    e("s_waitcnt vmcnt(0)")
    stamp("wland")
    for c in range(4):
        for m in range(4):
            b = 64 + 16 * c + 4 * m
            e(f"ds_read_b64_tr_b16 v[{b}:{b+1}], v4 offset:{m*4096+c*32}")
            e(f"ds_read_b64_tr_b16 v[{b+2}:{b+3}], v4 offset:{m*4096+2048+c*32}")
    lds_wait("xnw", F_XN, "eq", 0, 19, 9, sleep=1)
    for m in range(4):
        e(f"ds_read2_b64 v[{32+4*m}:{35+4*m}], v6 offset0:{8*m} offset1:{8*m+4}")
    for m in range(4):
        e(f"s_waitcnt lgkmcnt({3-m})")
        for c in range(4):
            b = 64 + 16 * c + 4 * m
            acc = f"v[{48+4*c}:{51+4*c}]"
            e(f"v_mfma_f32_16x16x32_bf16 {acc}, v[{32+4*m}:{35+4*m}], v[{b}:{b+3}], {'0' if m == 0 else acc}")
    for c in range(4):
        e(f"v_add_u32 v{12+c}, 0x80, v{48+4*c}")
    tag([12, 13, 14, 15], 60)
    e("global_store_dwordx4 v7, v[12:15], s[58:59]" + (" " + lst if lst else ""))
    e("ds_write_b32 v10, v11")
    e("s_mov_b32 s100, 1"); e.note("this wave holds a tile payload (v7, v12..15, s58:59)")
    stamp("qpub")
    e("s_branch L_kpart")
    e.label("L_codeend")

    txt = wrap(e.text(), 256, 1024, LDS_BYTES, 128, sgpr=102)
    build(txt, name)
    if out_path:
        open(out_path, "w").write(txt)
    return txt

DOC = """; ---------------------------------------------------------------------------------------------
;
; ---------------------------------------------------------------------------------------------
"""
if __name__ == "__main__":
    txt = gen("k39")
    gen("k39_st", stamps=True)
    gen("k39x", forcex=True)
    hdr = open('parallel_sum__gqa_block_cached__glu_gated_bilinear__decode.s.ref').read().split("; Override launch geometry")[0]
    open('parallel_sum__gqa_block_cached__glu_gated_bilinear__decode.s','w').write(hdr + DOC + txt)
```
